```python
import torch

def _softmax(x, axis=-1):
    return torch.softmax(x, dim=axis)
def _gelu(x):
    return torch.nn.functional.gelu(x, approximate="tanh")
def _silu(x):
    return torch.nn.functional.silu(x)
def _sigmoid(x):
    return torch.sigmoid(x)
def _layernorm(x, axis=-1, eps=1e-5):
    m = x.mean(dim=axis, keepdim=True)
    v = x.var(dim=axis, keepdim=True, unbiased=False)
    return (x - m) / torch.sqrt(v + eps)
def _scatter_add(tgt, idx, src, axis=0):
    return tgt.clone().index_add_(axis, idx, src)
def _segment_sum(src, seg, n):
    out = torch.zeros((n,) + src.shape[1:], dtype=src.dtype)
    return out.index_add_(0, seg, src)
def _pad(x, pw):
    flat = tuple(v for pair in reversed(pw) for v in pair)
    return torch.nn.functional.pad(x, flat)

kernel_name = 'recurrent_scan__softmax_full_mha__dense_activation_relu__prompt'

def setup_inputs():

    _w = (lambda a: (lambda t: t.to(torch.bfloat16) if t.is_floating_point() else t)(torch.as_tensor(a)))
    def _A_setup():
        B, S, D = 1, 2048, 512
        return {
            "x": _w((lambda *s: torch.randn(*s, dtype=torch.bfloat16) * 0.05)(B, S, D)),
            "wqkv": _w((lambda *s: torch.randn(*s, dtype=torch.bfloat16) * 0.05)(D, 3 * D)),
            "wo": _w((lambda *s: torch.randn(*s, dtype=torch.bfloat16) * 0.05)(D, D)),
        }
    _A_in = _A_setup()

    def _B_setup():
        B, S, D, Dff = 1, 2048, 512, 1792
        return {
            "x": _w((lambda *s: torch.randn(*s, dtype=torch.bfloat16) * 0.05)(B, S, D)),
            "w1": _w((lambda *s: torch.randn(*s, dtype=torch.bfloat16) * 0.05)(D, Dff)),
            "w2": _w((lambda *s: torch.randn(*s, dtype=torch.bfloat16) * 0.05)(Dff, D)),
        }
    _B_in = _B_setup()

    return {
        "A_x": _A_in["x"],
        "A_wqkv": _A_in["wqkv"],
        "A_wo": _A_in["wo"],
        "B_x": _B_in["x"],
        "B_w1": _B_in["w1"],
        "B_w2": _B_in["w2"],
    }

def reference(A_x, A_wqkv, A_wo, B_x, B_w1, B_w2):
    def _A_ref(x, wqkv, wo):
        B, S, D = x.shape
        H = 32; Dh = D // H
        qkv = (lambda x, *d: x.permute(*d))((x @ wqkv).reshape(B, S, 3, H, Dh), 2, 0, 3, 1, 4)
        q, k, v = qkv[0], qkv[1], qkv[2]
        scale = Dh ** -0.5
        scores = torch.einsum("bhqd,bhkd->bhqk", q, k) * scale
        p = _softmax(scores, axis=-1)
        o = torch.einsum("bhqk,bhkd->bhqd", p, v)
        return (lambda x, *d: x.permute(*d))(o, 0, 2, 1, 3).reshape(B, S, D) @ wo

    def _B_ref(x, w1, w2):
        h = torch.einsum("bsd,df->bsf", x, w1)
        zero = torch.zeros_like(h)
        h = torch.maximum(h, zero)
        return torch.einsum("bsf,fd->bsd", h, w2)

    x = A_x
    xn = _layernorm(x, axis=-1)
    s = _A_ref(xn, A_wqkv, A_wo)
    g = _silu(_B_ref(xn, B_w1, B_w2))
    return x + s * g
```

```python
import re

def v(i, n=1):
    return f"v{i}" if n == 1 else f"v[{i}:{i+n-1}]"
def s(i, n=1):
    return f"s{i}" if n == 1 else f"s[{i}:{i+n-1}]"

class Asm:
    def __init__(self):
        self.lines = []
    def __call__(self, txt):
        for ln in txt.split("\n"):
            ln = ln.strip()
            if ln:
                self.lines.append(ln)
    def label(self, name):
        self.lines.append(name + ":")
    def text(self):
        out = []
        for ln in self.lines:
            if ln.endswith(":") or ln.startswith("."):
                out.append(ln)
            else:
                out.append("    " + ln)
        return "\n".join(out) + "\n"

REG = re.compile(r"\b([vsa])(?:(\d+)\b|\[(\d+):(\d+)\])")
TRANS = ("v_exp_", "v_log_", "v_rcp_", "v_rsq_", "v_sqrt_", "v_sin_", "v_cos_")

def regs_of(op):
    op = op.strip()
    r = set()
    for m in REG.finditer(op):
        k = m.group(1)
        if m.group(2) is not None:
            r.add((k, int(m.group(2))))
        else:
            for i in range(int(m.group(3)), int(m.group(4)) + 1):
                r.add((k, i))
    if re.search(r"\bvcc\b", op): r.add(("s", "vcc"))
    if re.search(r"\bvcc_lo\b|\bvcc_hi\b", op): r.add(("s", "vcc"))
    if re.search(r"\bm0\b", op): r.add(("s", "m0"))
    if re.search(r"\bexec(_lo|_hi)?\b", op): r.add(("s", "exec"))
    return r

def split_ops(rest):
    ops = []; depth = 0; cur = ""
    for ch in rest:
        if ch == "[": depth += 1
        if ch == "]": depth -= 1
        if ch == "," and depth == 0:
            ops.append(cur.strip()); cur = ""
        else:
            cur += ch
    if cur.strip(): ops.append(cur.strip())
    return ops

class Ins:
    def __init__(self, txt):
        self.txt = txt
        t = txt.split(";")[0].strip()
        p = t.split(None, 1)
        self.op = p[0]
        rest = p[1] if len(p) > 1 else ""
        self.ops = split_ops(rest)
        op = self.op
        self.w = set(); self.r = set()
        self.kind = "other"
        self.mfma = op.startswith("v_mfma") or op.startswith("v_smfmac")
        self.valu = op.startswith("v_") and not self.mfma
        self.trans = op.startswith(TRANS)
        self.dot = op.startswith("v_dot")
        self.salu = op.startswith("s_")
        self.vmem = op.startswith(("buffer_", "global_"))
        self.ds = op.startswith("ds_")
        self.smem = op.startswith(("s_load", "s_memtime", "s_memrealtime", "s_buffer_load"))
        self.ldsdma = self.vmem and (" lds" in t or "_lds_" in op)
        self.dpp = "dpp" in op or "row_" in t or "quad_perm" in t
        self.sdwa = "sdwa" in op
        o = self.ops
        if self.mfma:
            self.D = regs_of(o[0]); self.A = regs_of(o[1]); self.B = regs_of(o[2]); self.C = regs_of(o[3].split()[0])
            self.w = self.D; self.r = self.A | self.B | self.C
            self.passes = 8 if "32x32" in op else 4
        elif self.valu:
            if op.startswith("v_cmp"):
                self.w = regs_of(o[0]); self.r = set().union(*[regs_of(x) for x in o[1:]])
                if op.startswith("v_cmpx"): self.w.add(("s", "exec"))
            elif op.startswith(("v_permlane32_swap", "v_permlane16_swap", "v_swap")):
                self.w = regs_of(o[0]) | regs_of(o[1]); self.r = set(self.w)
            elif op.startswith(("v_add_co", "v_sub_co", "v_addc_co", "v_subb_co")):
                self.w = regs_of(o[0]) | regs_of(o[1]); self.r = set().union(*[regs_of(x) for x in o[2:]])
            elif op == "v_nop":
                pass
            else:
                self.w = regs_of(o[0]); self.r = set().union(*[regs_of(x) for x in o[1:]]) if len(o) > 1 else set()
                if op.startswith(("v_fmac", "v_dot2c", "v_pk_fmac", "v_writelane")) or "UNUSED_PRESERVE" in t:
                    self.r |= self.w
                if op.startswith("v_cndmask") and len(o) == 3: self.r.add(("s", "vcc"))
        elif self.vmem:
            if op.startswith(("buffer_inv", "buffer_wbl2")):
                pass
            elif "load" in op and not self.ldsdma:
                self.w = regs_of(o[0]); self.r = set().union(*[regs_of(x) for x in o[1:]])
                if "d16" in op: self.r |= self.w
            elif "atomic" in op and " sc0" in t:
                if op.startswith("buffer_"):
                    self.w = regs_of(o[0]); self.r = set().union(*[regs_of(x) for x in o])
                else:
                    self.w = regs_of(o[0]); self.r = set().union(*[regs_of(x) for x in o[1:]])
            else:
                self.r = set().union(*[regs_of(x) for x in o])
                if self.ldsdma: self.r.add(("s", "m0"))
            self.wide_store = ("store" in op) and ("x4" in op or "x3" in op)
            if self.wide_store:
                self.sdata = regs_of(o[0]) if op.startswith("buffer_") else regs_of(o[1])
        elif self.ds:
            if op.startswith(("ds_read", "ds_bpermute", "ds_permute", "ds_swizzle")) or "_rtn" in op:
                self.w = regs_of(o[0]); self.r = set().union(*[regs_of(x) for x in o[1:]])
            else:
                self.r = set().union(*[regs_of(x) for x in o])
        elif self.salu:
            if op.startswith(("s_cmp", "s_cbranch", "s_branch", "s_waitcnt", "s_nop", "s_barrier", "s_endpgm", "s_setprio", "s_sleep", "s_bitcmp")):
                self.r = set().union(*[regs_of(x) for x in o]) if o else set()
                if op.startswith("s_cbranch_vcc"): self.r.add(("s", "vcc"))
            else:
                self.w = regs_of(o[0]); self.r = set().union(*[regs_of(x) for x in o[1:]]) if len(o) > 1 else set()
                if "saveexec" in op: self.w.add(("s", "exec"))
                if op.startswith(("s_addk", "s_mulk", "s_cmov")): self.r |= self.w
        self.states = 1
        if op == "s_nop": self.states = int(o[0], 0) + 1
        self.target = o[0] if op.startswith(("s_cbranch", "s_branch")) else None

def vonly(x): return {r for r in x if r[0] in "va"}
def sonly(x): return {r for r in x if r[0] == "s"}

def need(p, c):
    n = 0
    if p.valu and not p.dot:
        wv = vonly(p.w); ws = sonly(p.w)
        if c.mfma and wv & c.r: n = max(n, 2)
        if p.trans and c.valu and not c.trans and wv & c.r: n = max(n, 1)
        if p.trans and c.trans and wv & c.r: n = max(n, 1)
        if c.op.startswith("v_permlane") and wv & c.r: n = max(n, 2)
        if c.op.startswith(("v_readlane", "v_readfirstlane")) and wv & c.r: n = max(n, 1)
        if c.dpp and wv & c.r: n = max(n, 2)
        if ws:
            if c.valu and ws & c.r: n = max(n, 2)
            if c.vmem and ws & c.r: n = max(n, 5)
            if c.salu and ws & c.r: n = max(n, 1)
            if ("s", "exec") in ws and (c.mfma or c.dpp or c.op.startswith(("v_permlane", "v_readlane", "v_readfirstlane"))): n = max(n, 5)
        if p.sdwa and c.valu and wv & (c.r | c.w): n = max(n, 1)
    if p.dot:
        wv = vonly(p.w)
        if c.dot and c.op == p.op:
            srcab = set().union(*[regs_of(x) for x in c.ops[1:3]])
            if wv & srcab: n = max(n, 3)
        elif wv & (c.r | c.w): n = max(n, 3)
    if p.mfma:
        big = {8: 12, 4: 8}[p.passes]
        if c.mfma:
            if p.D & (c.A | c.B): n = max(n, big)
            if p.D & c.C and not (p.D == c.C and p.passes == c.passes): n = max(n, big - 2)
            if p.D & c.D and not p.D & c.C: n = max(n, big - 2)
        elif (c.valu or c.vmem or c.ds) and p.D & (c.r | c.w): n = max(n, big)
        if c.valu and p.C & c.w: n = max(n, {8: 7, 4: 3}[p.passes])
    if p.salu and ("s", "m0") in p.w and c.ldsdma: n = max(n, 1)
    if p.vmem and getattr(p, "wide_store", False):
        if p.sdata & c.w: n = max(n, 2 if (c.valu or c.mfma) else 1)
    return n

def lint(text, name="?"):
    ins = []; labels = {}
    for ln in text.split("\n"):
        t = ln.split(";")[0].strip()
        if not t or t.startswith("."): continue
        if t.endswith(":"):
            labels[t[:-1]] = len(ins); continue
        ins.append(Ins(t))
    def succ(i):
        x = ins[i]
        if x.op == "s_endpgm": return []
        if x.op == "s_branch": return [labels[x.target]]
        r = [i + 1] if i + 1 < len(ins) else []
        if x.target: r.append(labels[x.target])
        return r
    errs = []
    for i, p in enumerate(ins):
        if not (p.valu or p.mfma or p.vmem or (p.salu and ("s", "m0") in p.w)): continue
        stack = [(j, 0) for j in succ(i)]; seen = set()
        while stack:
            j, d = stack.pop()
            if (j, d) in seen or d > 13: continue
            seen.add((j, d))
            c = ins[j]
            n = need(p, c)
            if n > d: errs.append(f"[{name}] hazard: need {n} have {d}: '{p.txt}' -> '{c.txt}'")
            for k in succ(j): stack.append((k, d + c.states))
    seen = set(); stack = [(0, (), (), False)]
    steps = 0
    while stack:
        i, vm, lg, sm = stack.pop()
        key = (i, vm, lg, sm)
        if key in seen: continue
        seen.add(key); steps += 1
        if steps > 400000:
            errs.append(f"[{name}] waitcnt walk gave up"); break
        x = ins[i]
        touched = x.r | x.w
        for q, nm in ((vm, "vm"), (lg, "lgkm")):
            for dst in q:
                if dst and set(dst) & touched:
                    if (x.vmem and nm == "vm" or x.ds and nm == "lgkm") and not set(dst) & x.r: continue
                    errs.append(f"[{name}] missing {nm} wait: '{x.txt}' touches {sorted(set(dst) & touched, key=str)[:2]}")
        if x.op == "s_waitcnt":
            t = " ".join(x.ops)
            m = re.search(r"vmcnt\((\d+)\)", t)
            if m:
                n = int(m.group(1)); vm = vm[len(vm) - n:] if n < len(vm) else vm
                if n == 0: vm = ()
            m = re.search(r"lgkmcnt\((\d+)\)", t)
            if m:
                n = int(m.group(1))
                if n == 0: lg = (); sm = False
                elif not sm and n < len(lg): lg = lg[len(lg) - n:]
        elif x.vmem and not x.op.startswith(("buffer_inv", "buffer_wbl2")):
            vm = (vm + (tuple(sorted(x.w, key=str)),))[-64:]
        elif x.ds:
            lg = (lg + (tuple(sorted(x.w, key=str)),))[-32:]
        elif x.smem:
            lg = (lg + (tuple(sorted(x.w, key=str)),))[-32:]; sm = True
        for k in succ(i): stack.append((k, vm, lg, sm))
    out = []
    for e in errs:
        if e not in out: out.append(e)
    return out

def kdesc(name, vgpr, sgpr=96, accum=None):
    if accum is None: accum = (vgpr + 3) // 4 * 4
    return f""".section .rodata,"a"
.p2align 6
.amdhsa_kernel {name}
  .amdhsa_next_free_vgpr {vgpr}
  .amdhsa_next_free_sgpr {sgpr}
  .amdhsa_accum_offset {accum}
  .amdhsa_group_segment_fixed_size 0
  .amdhsa_kernarg_size 72
  .amdhsa_user_sgpr_count 2
  .amdhsa_user_sgpr_kernarg_segment_ptr 1
  .amdhsa_system_sgpr_workgroup_id_x 1
  .amdhsa_float_denorm_mode_32 3
.end_amdhsa_kernel
"""

def khead(name):
    return f""".text
.globl {name}
.p2align 8
.type {name},@function
{name}:
"""
```

```python
from asmlib import *

MB = 1 << 20
QF, KF, VF, HF, OF, FF, W2F, WOF, RS = 0, 2*MB, 4*MB, 6*MB, 13*MB, 15*MB, 17*MB, 19*MB, 20*MB
WS_BYTES = 21 * MB
LOG2E = 1.4426950408889634
import struct
def fbits(x): return "0x%08x" % struct.unpack("<I", struct.pack("<f", x))[0]

def srd(a, d, base, nbytes):
    a(f"""s_mov_b32 {s(d)}, {s(base)}
    s_mov_b32 {s(d+1)}, {s(base+1)}
    s_mov_b32 {s(d+2)}, {hex(nbytes)}
    s_mov_b32 {s(d+3)}, 0x20000""")

K1_LDS = 151552
K1_XT = 120 * 1024
K1_CS = 140 * 1024
K1_RX = 147 * 1024

def gen_k1(name="k1_kernel"):
    a = Asm()
    sX, sW, sWS, sT2, sTO = 20, 24, 28, 32, 36
    sRB, sCOL, sWV = 40, 41, 42
    a(f"""s_cmp_ge_u32 s2, 256
    s_cbranch_scc1 {name}_end
    s_load_dwordx4 s[4:7], s[0:1], 0
    s_load_dwordx2 s[8:9], s[0:1], 16
    s_load_dwordx4 s[12:15], s[0:1], 32
    s_load_dwordx2 s[16:17], s[0:1], 64
    v_lshrrev_b32 v1, 6, v0
    v_and_b32 v0, 63, v0
    s_and_b32 s3, s2, 1
    v_readfirstlane_b32 {s(sWV)}, v1
    s_lshl_b32 s3, s3, 3
    s_bfe_u32 {s(sRB)}, s2, 0x30004
    s_add_u32 {s(sRB)}, {s(sRB)}, s3
    s_bfe_u32 s3, s2, 0x20001
    s_lshl_b32 s3, s3, 1
    s_lshr_b32 {s(sCOL)}, s2, 7
    s_add_u32 {s(sCOL)}, {s(sCOL)}, s3
    s_cmp_lt_u32 {s(sWV)}, 4
    s_cbranch_scc1 {name}_cons
    s_sub_u32 {s(sWV)}, {s(sWV)}, 4""")
    vX0, vX1, vW, vT, vTR = 2, 3, 4, 5, 6
    a(f"""v_lshrrev_b32 v7, 3, v0
    v_lshlrev_b32 v7, 10, v7
    v_and_b32 v8, 7, v0
    v_lshrrev_b32 v9, 4, v0
    v_xor_b32 v8, v8, v9
    v_lshl_add_u32 {v(vX0)}, v8, 4, v7
    v_xor_b32 {v(vX1)}, 64, {v(vX0)}
    v_lshrrev_b32 v7, 2, v0
    v_and_b32 v8, 3, v0
    v_lshlrev_b32 v8, 4, v8
    s_lshl_b32 s43, {s(sRB)}, 2
    s_add_u32 s43, s43, {s(sWV)}
    s_lshl_b32 s43, s43, 15
    s_lshl_b32 s44, {s(sWV)}, 12
    s_bitcmp1_b32 s2, 3
    s_waitcnt lgkmcnt(0)""")
    srd(a, sX, 4, 2 * MB)
    a(f"s_cbranch_scc0 {name}_loadA")
    for typ in ("B", "A"):
        NT = 7 if typ == "B" else 6
        ldw = 3584 if typ == "B" else 3072
        slot = 16384 + NT * 4096
        if typ == "A": a.label(f"{name}_loadA")
        sSX, sMX, sSW, sMW, sTmp = 43, 44, 45, 46, 47
        if typ == "B":
            srd(a, sW, 12, 512 * 3584)
            a(f"s_mul_i32 {s(sSW)}, {s(sCOL)}, 448")
        else:
            srd(a, sW, 6, 512 * 3072)
            a(f"s_lshl_b32 {s(sSW)}, {s(sCOL)}, 7")
        a(f"""s_mul_i32 {s(sTmp)}, {s(sWV)}, {16 * ldw}
        s_add_u32 {s(sSW)}, {s(sSW)}, {s(sTmp)}
        s_mul_i32 {s(sMW)}, {s(sWV)}, {NT * 1024}
        s_movk_i32 {s(sTmp)}, {ldw}
        v_mad_u32_u24 {v(vW)}, v7, {s(sTmp)}, v8""")
        def coloff(nt):
            return nt * 64 if typ == "B" else (nt >> 1) * 1024 + (nt & 1) * 64
        def issue(st):
            sb = (st % 3) * slot
            for jj in range(4):
                a(f"""s_add_u32 m0, {s(sMX)}, {sb + jj * 1024}
                s_add_u32 {s(sTmp)}, {s(sSX)}, {st * 128 + jj * 8192}
                buffer_load_dwordx4 {v(vX1 if jj & 1 else vX0)}, {s(sX,4)}, {s(sTmp)} offen lds""")
            for nt in range(NT):
                off = coloff(nt)
                a(f"s_add_u32 m0, {s(sMW)}, {sb + 16384 + nt * 1024 - off}")
                if nt == 0: a(f"s_add_u32 {s(sTmp)}, {s(sSW)}, {st * 64 * ldw}")
                else: a("s_nop 0")
                a(f"buffer_load_dwordx4 {v(vW)}, {s(sW,4)}, {s(sTmp)} offen offset:{off} lds")
        n = 4 + NT
        E = 5 if typ == "A" else 0
        issue(0); issue(1); issue(2)
        if typ == "A":
            srd(a, sT2, 14, 1792 * 1024); srd(a, sTO, 8, 512 * 1024); srd(a, sWS, 16, WS_BYTES)
            a(f"""v_lshl_add_u32 {v(vT)}, v7, 10, v8
            s_mul_i32 s48, {s(sWV)}, 5120
            s_add_u32 s48, s48, {K1_XT}
            s_mul_i32 s49, {s(sCOL)}, 14
            s_lshl_b32 s50, {s(sRB)}, 6""")
            for j in range(4):
                a(f"""s_add_u32 s51, {s(sWV)}, {4 * j}
                s_min_u32 s51, s51, 13
                s_add_u32 {s(52 + j)}, s51, s49
                s_lshl_b32 s51, {s(52 + j)}, 14
                s_add_u32 m0, s48, {j * 1024}
                s_add_u32 s51, s51, s50
                buffer_load_dwordx4 {v(vT)}, {s(sT2,4)}, s51 offen lds""")
            a(f"""s_lshl_b32 s56, {s(sCOL)}, 2
            s_add_u32 s56, s56, {s(sWV)}
            s_lshl_b32 s51, s56, 14
            s_add_u32 m0, s48, 4096
            s_add_u32 s51, s51, s50
            buffer_load_dwordx4 {v(vT)}, {s(sTO,4)}, s51 offen lds""")
            a(f"""v_lshrrev_b32 v9, 5, v0
            v_bfe_u32 v10, v0, 2, 2
            v_lshl_add_u32 v9, v9, 2, v10
            v_lshlrev_b32 v9, 6, v9
            v_bfe_u32 v10, v0, 4, 1
            v_lshl_add_u32 v9, v10, 5, v9
            v_and_b32 v10, 3, v0
            v_lshl_add_u32 v9, v10, 3, v9
            v_add_u32 {v(vTR)}, s48, v9
            v_lshlrev_b32 v11, 4, v0""")
        a(f"s_waitcnt vmcnt({2 * n + E})\ns_barrier")
        a(f"s_waitcnt vmcnt({n + E})\ns_barrier")
        for st in range(3, 8):
            issue(st)
            if typ == "A" and st == 4:
                for j in range(5):
                    a(f"""ds_read_b64_tr_b16 {v(12 + 4*j, 2)}, {v(vTR)} offset:{j * 1024}
                    ds_read_b64_tr_b16 {v(14 + 4*j, 2)}, {v(vTR)} offset:{j * 1024 + 512}""")
                a(f"""s_mul_i32 s57, {s(sRB)}, 112
                s_lshl_b32 s58, {s(sRB)}, 5
                s_add_u32 s58, s58, s56
                s_lshl_b32 s58, s58, 10
                s_add_u32 s58, s58, {WOF}
                s_waitcnt lgkmcnt(0)""")
                for j in range(4):
                    a(f"""s_add_u32 s51, s57, {s(52 + j)}
                    s_lshl_b32 s51, s51, 10
                    s_add_u32 s51, s51, {W2F}
                    buffer_store_dwordx4 {v(12 + 4*j, 4)}, v11, {s(sWS,4)}, s51 offen""")
                a(f"buffer_store_dwordx4 {v(28, 4)}, v11, {s(sWS,4)}, s58 offen")
            a(f"s_waitcnt vmcnt({n})\ns_barrier")
        a(f"s_waitcnt vmcnt(0)\ns_barrier\ns_endpgm")

    a.label(f"{name}_cons")
    ACC = 16; BUF = 128; AX = 192; AW = 196; CS = 200; SUM = 207; SQ = 209; ONE = 211
    a(f"""v_and_b32 v1, 31, v0
    v_lshrrev_b32 v2, 5, v0
    v_bfe_u32 v3, v0, 1, 3
    v_xor_b32 v3, v3, v2
    v_lshlrev_b32 v3, 4, v3
    v_lshl_add_u32 v3, v1, 7, v3
    s_lshl_b32 s43, {s(sWV)}, 12
    v_add_u32 v3, s43, v3
    v_bfe_u32 v4, v0, 2, 2
    v_lshl_add_u32 v4, v2, 3, v4
    v_lshlrev_b32 v4, 6, v4
    v_bfe_u32 v5, v0, 4, 1
    v_lshl_add_u32 v4, v5, 5, v4
    v_and_b32 v5, 3, v0
    v_lshl_add_u32 v4, v5, 3, v4
    v_mov_b32 {v(ONE)}, 0x3f803f80""")
    for p in range(4):
        a(f"""s_add_u32 s44, {s(sWV)}, {p}
        s_and_b32 {s(52 + p)}, s44, 3
        s_lshl_b32 s44, {s(52 + p)}, 5
        v_xor_b32 {v(AX + p)}, s44, v3""")
    for i in range(112): a(f"v_mov_b32 {v(ACC + i)}, 0")
    for i in range(CS, ONE): a(f"v_mov_b32 {v(i)}, 0")
    a(f"""s_lshl_b32 s45, {s(sRB)}, 2
    s_add_u32 s45, s45, {s(sWV)}
    v_lshlrev_b32 v6, 4, v0
    s_bitcmp1_b32 s2, 3
    s_waitcnt lgkmcnt(0)""")
    srd(a, sWS, 16, WS_BYTES)
    a(f"s_cbranch_scc0 {name}_consA")
    for typ in ("B", "A"):
        NT = 7 if typ == "B" else 6
        slot = 16384 + NT * 4096
        if typ == "A": a.label(f"{name}_consA")
        for p in range(4):
            a(f"""s_mul_i32 s44, {s(52 + p)}, {NT * 1024}
            s_add_u32 s44, s44, 16384
            v_add_u32 {v(AW + p)}, s44, v4""")
        xr = lambda b: BUF + 32 * b
        wr = lambda b, nt: BUF + 32 * b + 4 + 4 * nt
        def reads(p):
            b = p & 1
            r = [f"ds_read_b128 {v(xr(b),4)}, {v(AX + p)}"]
            for nt in range(NT):
                r.append(f"ds_read_b64_tr_b16 {v(wr(b,nt),2)}, {v(AW + p)} offset:{nt * 1024}")
                r.append(f"ds_read_b64_tr_b16 {v(wr(b,nt)+2,2)}, {v(AW + p)} offset:{nt * 1024 + 256}")
            return r
        def mfma(b, nt):
            d = v(ACC + 16 * nt, 16)
            if typ == "A" and nt >= 4: return f"v_mfma_f32_32x32x16_bf16 {d}, {v(xr(b),4)}, {v(wr(b,nt),4)}, {d}"
            return f"v_mfma_f32_32x32x16_bf16 {d}, {v(wr(b,nt),4)}, {v(xr(b),4)}, {d}"
        def stat(b):
            r = []
            for i in range(4):
                r.append(f"v_dot2c_f32_bf16 {v(SUM + (i & 1))}, {v(xr(b)+i)}, {v(ONE)}")
                if typ == "A": r.append(f"v_dot2c_f32_bf16 {v(SQ + (i & 1))}, {v(xr(b)+i)}, {v(xr(b)+i)}")
            return r
        def csd(nt):
            return [f"v_dot2c_f32_bf16 {v(CS + nt)}, {v(wr(0,nt)+i)}, {v(ONE)}" for i in range(4)]
        nr = 1 + 2 * NT
        a(f"s_mov_b32 s46, 0\ns_mov_b32 s47, 0\ns_mov_b32 s49, {slot}\ns_mov_b32 s50, {-2 * slot}\ns_barrier")
        for r in reads(0): a(r)
        a.label(f"{name}_loop{typ}")
        for p in range(4):
            b = p & 1
            rd = reads((p + 1) & 3)
            if p < 3:
                per = [3, 3, 3, 2, 2, 2, 0] if NT == 7 else [3, 3, 3, 2, 2, 0]
            else:
                per = [0, 0, 3, 3, 3, 3, 3] if NT == 7 else [0, 0, 4, 3, 3, 3]
            val = stat(b)
            if p == 0: val = [x for nt in range(4) for x in csd(nt)] + val
            late = []
            if p == 1: late = [x for nt in range(4, NT) for x in csd(nt)]
            val = late + val
            nv = len(val)
            issued = 0
            first_wait = nr - 7
            for nt in range(NT):
                if nt == 0: a(f"s_waitcnt lgkmcnt({first_wait})")
                if nt == 3 and p < 3: a(f"s_waitcnt lgkmcnt({issued})")
                if nt == 2 and p == 3:
                    a(f"""s_waitcnt lgkmcnt(0)
                    s_cmp_eq_u32 s46, 7
                    s_cbranch_scc1 {name}_tail{typ}
                    s_barrier
                    s_add_u32 s47, s47, 1
                    s_cmp_eq_u32 s47, 3
                    s_cselect_b32 s44, s50, s49
                    s_cselect_b32 s47, 0, s47
                    v_add_u32 {v(AX)}, s44, {v(AX)}
                    v_add_u32 {v(AW)}, s44, {v(AW)}""")
                    val = val[:] + [f"v_add_u32 {v(x + q)}, s44, {v(x + q)}" for q in range(1, 4) for x in (AX, AW)]
                a(mfma(b, nt))
                if p == 3:
                    k = 2 if nt < 2 else -(-len(val) // (NT - nt))
                elif p == 1:
                    k = 4 if nt < NT - 4 else -(-len(val) // (NT - nt))
                elif p == 0 and nt < 3:
                    k = 4
                else:
                    k = -(-len(val) // (NT - nt))
                take, val = val[:k], val[k:]
                rr, rd = rd[:per[nt]], rd[per[nt]:]
                issued += len(rr)
                for x in take: a(x)
                for x in rr: a(x)
            assert not val and not rd, (typ, p, val, rd)
        a(f"s_add_u32 s46, s46, 1\ns_branch {name}_loop{typ}")
        a.label(f"{name}_tail{typ}")
        tv = stat(1)[4:] if typ == "A" else []
        for nt in range(2, NT):
            a(mfma(1, nt))
            if tv: a(tv.pop(0))
        a(f"""s_lshr_b32 s44, {s(sWV)}, 1
        s_lshl_b32 s44, s44, 9
        s_and_b32 s48, {s(sWV)}, 1
        s_lshl_b32 s48, s48, 3
        s_add_u32 s44, s44, s48
        s_add_u32 s44, s44, {K1_CS}
        v_lshlrev_b32 v7, 4, v1
        v_lshl_add_u32 v7, v2, 2, v7
        v_add_u32 v7, s44, v7""")
        for nt in range(NT):
            a(f"v_cvt_pk_bf16_f32 {v(BUF + nt)}, {v(CS + nt)}, {v(CS + nt)}")
        for nt in range(NT):
            a(f"v_and_b32 {v(BUF + nt)}, 0xffff0000, {v(BUF + nt)}")
        for nt in range(NT):
            a(f"v_sub_f32 {v(BUF + nt)}, {v(CS + nt)}, {v(BUF + nt)}")
        for nt in range(NT):
            a(f"v_cvt_pk_bf16_f32 {v(BUF + nt)}, {v(CS + nt)}, {v(BUF + nt)}")
        for nt in range(NT):
            a(f"ds_write_b32 v7, {v(BUF + nt)} offset:{nt * 1024}")
        a(f"""v_add_f32 v8, {v(SUM)}, {v(SUM+1)}
        v_add_f32 v10, {v(SQ)}, {v(SQ+1)}
        v_mov_b32 v9, v8
        v_mov_b32 v11, v10
        s_waitcnt lgkmcnt(0)
        s_barrier
        v_permlane32_swap_b32 v8, v9
        v_permlane32_swap_b32 v10, v11
        v_add_u32 v7, {K1_CS}, v6""")
        for nt in range(NT):
            a(f"ds_read_b128 {v(BUF + 8 + 4 * nt, 4)}, v7 offset:{nt * 1024}")
        M4 = 12
        a(f"""v_add_f32 v8, v8, v9
        v_add_f32 v10, v10, v11
        v_mul_f32 v8, {fbits(-1.0/512)}, v8
        v_cvt_pk_bf16_f32 {v(M4)}, v8, v8
        v_cvt_pk_bf16_f32 {v(M4+1)}, v8, v8
        v_cvt_pk_bf16_f32 {v(M4+2)}, v8, v8
        v_cvt_pk_bf16_f32 {v(M4+3)}, v8, v8""")
        RR = 212; RQ = 214; R16 = 216
        if typ == "A":
            a(f"""v_mul_f32 v9, v8, v8
            v_mov_b32 v11, {fbits(1.0/512)}
            v_fma_f32 v10, v10, v11, -v9
            v_max_f32 v10, 0, v10
            v_cvt_pk_bf16_f32 v10, v10, v10
            v_and_b32 v10, 0xffff0000, v10
            v_add_f32 v10, {fbits(1e-5)}, v10
            v_cvt_pk_bf16_f32 v10, v10, v10
            v_and_b32 v10, 0xffff0000, v10
            v_sqrt_f32 v10, v10
            s_lshl_b32 s44, {s(sWV)}, 7
            v_cvt_pk_bf16_f32 v10, v10, v10
            v_and_b32 v10, 0xffff0000, v10
            v_rcp_f32 {v(RR)}, v10
            s_add_u32 s44, s44, {K1_RX}
            v_lshl_add_u32 v9, v1, 2, s44
            v_lshl_add_u32 v11, v2, 4, s44
            v_mul_f32 {v(RQ)}, {fbits(0.25 * LOG2E)}, {v(RR)}
            ds_write_b32 v9, {v(RR)}""")
            for i in range(4):
                a(f"ds_read_b128 {v(R16 + 4 * i, 4)}, v11 offset:{32 * i}")
            a("s_waitcnt lgkmcnt(5)")
        else:
            a("s_nop 0\ns_waitcnt lgkmcnt(0)")
        for nt in range(NT):
            d = v(ACC + 16 * nt, 16); cf = v(BUF + 8 + 4 * nt, 4)
            if typ == "A" and nt >= 4: a(f"v_mfma_f32_32x32x16_bf16 {d}, {v(M4,4)}, {cf}, {d}")
            else: a(f"v_mfma_f32_32x32x16_bf16 {d}, {cf}, {v(M4,4)}, {d}")
        PK = BUF + 40
        if typ == "B":
            a(f"""s_mul_i32 s44, s45, 112
            s_mul_i32 s48, {s(sCOL)}, 14
            s_add_u32 s44, s44, s48
            s_lshl_b32 s44, s44, 10
            s_add_u32 s44, s44, {HF}
            s_nop 0""")
            for nt in range(NT):
                pk = PK + 8 * (nt & 1)
                for i in range(8):
                    a(f"v_cvt_pk_bf16_f32 {v(pk + i)}, {v(ACC + 16*nt + 2*i)}, {v(ACC + 16*nt + 2*i + 1)}")
                for i in range(8):
                    a(f"v_pk_max_i16 {v(pk + i)}, {v(pk + i)}, 0")
                if nt and nt % 2 == 0: a("s_add_u32 s44, s44, 4096")
                for sx in range(2):
                    a(f"buffer_store_dwordx4 {v(pk + 4*sx, 4)}, v6, {s(sWS,4)}, s44 offen offset:{(nt & 1) * 2048 + sx * 1024}")
                if nt == NT - 2: a("s_nop 3")
        else:
            a(f"""s_lshl_b32 s44, {s(sCOL)}, 8
            s_add_u32 s44, s44, s45
            s_lshl_b32 s44, s44, 10
            v_bfe_u32 v8, v0, 4, 1
            v_lshlrev_b32 v8, 16, v8
            v_lshl_add_u32 v8, v2, 9, v8
            v_and_b32 v9, 15, v0
            v_lshl_add_u32 v8, v9, 4, v8
            s_cmp_lg_u32 {s(sCOL)}, 0
            s_cbranch_scc1 {name}_nors
            s_lshl_b32 s48, s45, 7
            s_add_u32 s48, s48, {RS}
            v_lshlrev_b32 v9, 2, v1
            buffer_store_dword {v(RR)}, v9, {s(sWS,4)}, s48 offen""")
            a.label(f"{name}_nors")
            a("s_waitcnt lgkmcnt(0)")
            for nt in range(NT):
                pk = PK + 8 * (nt & 1)
                for i in range(8):
                    r = v(ACC + 16*nt + 2*i, 2)
                    if nt < 2: a(f"v_pk_mul_f32 {r}, {r}, {v(RQ,2)} op_sel_hi:[1,0]")
                    elif nt < 4: a(f"v_pk_mul_f32 {r}, {r}, {v(RR,2)} op_sel_hi:[1,0]")
                    else: a(f"v_pk_mul_f32 {r}, {r}, {v(R16 + 2*i, 2)}")
                for i in range(8):
                    a(f"v_cvt_pk_bf16_f32 {v(pk + i)}, {v(ACC + 16*nt + 2*i)}, {v(ACC + 16*nt + 2*i + 1)}")
                base = (QF, KF, VF)[nt >> 1] + (nt & 1) * 131072
                if nt < 4:
                    for sx in range(2):
                        a(f"""s_add_u32 s48, s44, {base + sx * 65536}
                        buffer_store_dwordx4 {v(pk + 4*sx, 4)}, v6, {s(sWS,4)}, s48 offen""")
                else:
                    a(f"s_add_u32 s48, s44, {base}")
                    for sx in range(2):
                        a(f"buffer_store_dwordx4 {v(pk + 4*sx, 4)}, v8, {s(sWS,4)}, s48 offen offset:{256 * sx}")
        a("s_endpgm")
    a.label(f"{name}_end")
    a("s_endpgm")
    return a.text(), 232

if __name__ == "__main__":
    t, nv = gen_k1()
    for e in lint(t, "k1"): print(e)
    print(len(t.split("\n")), "lines")
```

```python
from asmlib import *
from k1 import *

K2_ONES = 131072
K2_X = K2_ONES + 4096
K2_CNT = K2_X + 20480
K2_LDS = K2_CNT + 64

def lds_signal(a, vcnt, vone):
    a(f"""s_mov_b64 exec, 1
    ds_add_u32 {v(vcnt)}, {v(vone)}
    s_mov_b64 exec, -1""")

def lds_wait(a, lab, vcnt, vt, st, target):
    a.label(lab)
    a(f"""ds_read_b32 {v(vt)}, {v(vcnt)}
    s_waitcnt lgkmcnt(0)
    v_readfirstlane_b32 {s(st)}, {v(vt)}
    s_nop 0
    s_cmp_ge_u32 {s(st)}, {target}
    s_cbranch_scc1 {lab}_ok
    s_sleep 1
    s_branch {lab}""")
    a.label(lab + "_ok")

def gen_k2(name="k2_kernel", ffn_prio=2, force_fallback=False):
    a = Asm()
    sWS = 20; sH = 24; sQB = 25; sWV = 26
    a(f"""s_cmp_ge_u32 s2, 256
    s_cbranch_scc1 {name}_end
    s_load_dwordx2 s[16:17], s[0:1], 64
    v_lshrrev_b32 v1, 6, v0
    v_and_b32 v0, 63, v0
    s_and_b32 s3, s2, 7
    v_readfirstlane_b32 {s(sWV)}, v1
    s_lshl_b32 s3, s3, 2
    s_bfe_u32 {s(sH)}, s2, 0x20003
    s_add_u32 {s(sH)}, {s(sH)}, s3
    s_lshr_b32 {s(sQB)}, s2, 5
    v_lshlrev_b32 v1, 4, v0
    s_cmp_lt_u32 {s(sWV)}, 8
    s_cbranch_scc1 {name}_attn""")
    a(f"""s_setprio {ffn_prio}
    s_sub_u32 {s(sWV)}, {s(sWV)}, 8
    s_lshr_b32 s27, {s(sWV)}, 1
    s_and_b32 s28, {s(sWV)}, 1
    s_lshl_b32 s29, s27, 21
    s_lshl_b32 s30, {s(sH)}, 16
    s_add_u32 s29, s29, s30
    s_lshl_b32 s30, s28, 15
    s_add_u32 s29, s29, s30
    s_add_u32 s29, s29, {KF}
    s_lshl_b32 s30, {s(sWV)}, 15
    s_waitcnt lgkmcnt(0)""")
    srd(a, sWS, 16, WS_BYTES)
    for g in range(8):
        a(f"s_add_u32 m0, s30, {g * 4096}\ns_add_u32 s31, s29, {g * 4096}")
        for i in range(4):
            a(f"buffer_load_dwordx4 v1, {s(sWS,4)}, s31 offen offset:{i * 1024} lds")
    sW0, sW1, sH0, sH1 = 32, 33, 34, 35
    a(f"""s_mul_i32 s31, {s(sWV)}, 28
    s_lshl_b32 s36, {s(sQB)}, 1
    s_add_u32 s36, s36, s27
    s_xor_b32 s37, s36, 1
    s_lshl_b32 s38, {s(sH)}, 1
    s_add_u32 s38, s38, s28
    s_xor_b32 s39, s38, 1""")
    for i, base in enumerate((W2F, W2F, HF, HF)):
        a(f"""s_mul_i32 {s(32 + i)}, {s(36 + i)}, 112
        s_add_u32 {s(32 + i)}, {s(32 + i)}, s31
        s_lshl_b32 {s(32 + i)}, {s(32 + i)}, 10
        s_add_u32 {s(32 + i)}, {s(32 + i)}, {base}""")
    ACC = 8; RING = 72
    def floads(u):
        return [f"buffer_load_dwordx4 {v(RING + 16*u + 4*i, 4)}, v1, {s(sWS,4)}, {s(32 + i)} offen offset:{u * 1024}" for i in range(4)]
    def fm(u, j):
        d = v(ACC + 16*j, 16)
        return f"v_mfma_f32_32x32x16_bf16 {d}, {v(RING + 16*u + 4*(j >> 1), 4)}, {v(RING + 16*u + 8 + 4*(j & 1), 4)}, {d}"
    for u in range(4):
        for x in floads(u): a(x)
    a(f"s_waitcnt vmcnt({26 + 16})\ns_barrier")
    for i in range(64): a(f"v_mov_b32 {v(ACC + i)}, 0")
    a(f"""v_mov_b32 v2, {K2_CNT}
    v_mov_b32 v3, 1
    s_mov_b32 s40, 6
    s_waitcnt vmcnt(16)
    s_barrier""")
    a.label(f"{name}_floop")
    for i in range(4): a(f"s_add_u32 {s(32 + i)}, {s(32 + i)}, 4096")
    for u in range(4):
        a("s_waitcnt vmcnt(12)")
        for j in range(4): a(fm(u, j))
        for x in floads(u): a(x)
    a(f"""s_sub_u32 s40, s40, 1
    s_cmp_lg_u32 s40, 0
    s_cbranch_scc1 {name}_floop""")
    for u in range(4):
        a(f"s_waitcnt vmcnt({12 - 4*u})")
        for j in range(4): a(fm(u, j))
    for ph in (1, 2, 3, 0):
        a(f"""s_xor_b32 s41, {s(sWV)}, {ph}
        s_lshl_b32 s41, s41, 12
        s_add_u32 s41, s41, {K2_X}
        v_add_u32 v4, s41, v1""")
        if ph != 1:
            lds_wait(a, f"{name}_fw{ph}", 2, 5, 42, 4 * ((ph - 1) & 3))
            for i in range(4): a(f"ds_read_b128 {v(RING + 4*i, 4)}, v4 offset:{1024 * i}")
            for i in range(4):
                a(f"s_waitcnt lgkmcnt({3 - i})")
                for k in range(2):
                    r = v(ACC + 16*ph + 4*i + 2*k, 2)
                    a(f"v_pk_add_f32 {r}, {r}, {v(RING + 4*i + 2*k, 2)}")
        else:
            a("s_nop 7")
        if ph != 0:
            for i in range(4): a(f"ds_write_b128 v4, {v(ACC + 16*ph + 4*i, 4)} offset:{1024 * i}")
        lds_signal(a, 2, 3)
    for i in range(8):
        a(f"v_cvt_pk_bf16_f32 {v(RING + i)}, {v(ACC + 2*i)}, {v(ACC + 2*i + 1)}")
    a(f"""s_lshl_b32 s41, {s(sH)}, 3
    s_add_u32 s41, s41, {s(sQB)}
    s_lshl_b32 s41, s41, 2
    s_add_u32 s41, s41, {s(sWV)}
    s_lshl_b32 s41, s41, 11
    s_add_u32 s41, s41, {FF}
    buffer_store_dwordx4 {v(RING, 4)}, v1, {s(sWS,4)}, s41 offen
    buffer_store_dwordx4 {v(RING + 4, 4)}, v1, {s(sWS,4)}, s41 offen offset:1024
    s_endpgm""")

    a.label(f"{name}_attn")
    OA, OB, SA, SB, PA, PB, QA, QB_, KK, VV = 8, 24, 40, 56, 72, 80, 88, 92, 96, 104
    vK, vV, vST = 2, 3, 4
    a(f"""s_and_b32 s27, {s(sWV)}, 3
    s_lshr_b32 s28, {s(sWV)}, 2
    s_lshl_b32 s29, {s(sQB)}, 3
    s_lshl_b32 s30, s27, 1
    s_add_u32 s29, s29, s30
    s_add_u32 s29, s29, s28
    s_lshl_b32 s30, {s(sH)}, 6
    s_add_u32 s31, s30, s29
    s_xor_b32 s32, s31, 1
    s_lshl_b32 s31, s31, 10
    s_lshl_b32 s32, s32, 10
    s_waitcnt lgkmcnt(0)""")
    srd(a, sWS, 16, WS_BYTES)
    a(f"""buffer_load_dwordx4 {v(QA,4)}, v1, {s(sWS,4)}, s31 offen
    buffer_load_dwordx4 {v(QB_,4)}, v1, {s(sWS,4)}, s32 offen
    v_mov_b32 {v(SA)}, 0x3f803f80
    v_mov_b32 {v(SA+1)}, 0x3f803f80
    v_mov_b32 {v(SA+2)}, 0x3f803f80
    v_mov_b32 {v(SA+3)}, 0x3f803f80
    s_lshl_b32 s33, s27, 10
    s_add_u32 s33, s33, {K2_ONES}
    v_add_u32 v5, s33, v1
    v_mov_b32 v6, {K2_CNT}
    v_mov_b32 v7, 0
    ds_write_b128 v5, {v(SA,4)}
    ds_write_b32 v6, v7
    s_lshl_b32 s33, s28, 15
    v_add_u32 {v(vK)}, s33, v1
    v_and_b32 v5, 15, v0
    v_lshlrev_b32 v5, 4, v5
    v_lshrrev_b32 v7, 5, v0
    v_lshl_add_u32 v7, v7, 9, v5
    s_add_u32 s34, s33, 65536
    v_add_u32 v7, s34, v7
    v_add_u32 v5, {K2_ONES}, v5
    v_and_b32 {v(vST)}, 16, v0
    v_cmp_eq_u32 vcc, 0, {v(vST)}
    v_mov_b32 {v(vST)}, 0
    v_mov_b32 {v(PA)}, 0x1000
    v_cndmask_b32 {v(vV)}, v5, v7, vcc
    v_cndmask_b32 {v(vST)}, {v(vST)}, {v(PA)}, vcc""")
    for i in range(32): a(f"v_mov_b32 {v(OA + i)}, 0")
    for i in range(8): a(f"v_mov_b32 {v(PB + i)}, 0")
    for i in range(8): a(f"v_mov_b32 {v(VV + 8 + i)}, 0")
    a(f"""s_mov_b32 s40, 0
    s_waitcnt lgkmcnt(0)
    s_barrier
    ds_read_b128 {v(KK,4)}, {v(vK)}
    ds_read_b128 {v(VV,4)}, {v(vV)}
    ds_read_b128 {v(VV+4,4)}, {v(vV)} offset:256
    ds_read_b128 {v(KK+4,4)}, {v(vK)} offset:1024
    v_lshrrev_b32 v5, 2, {v(vST)}
    v_add_u32 {v(vV)}, {v(vV)}, v5
    s_waitcnt vmcnt(0) lgkmcnt(3)
    v_mfma_f32_32x32x16_bf16 {v(SA,16)}, {v(KK,4)}, {v(QA,4)}, 0
    s_nop 7
    s_nop 1""")
    def phase(S, P, mf, extra, filler):
        e = [f"v_exp_f32 {v(S+i)}, {v(S+i)}" for i in range(16)]
        c = [f"v_cvt_pk_bf16_f32 {v(P+i)}, {v(S+2*i)}, {v(S+2*i+1)}" for i in range(8)]
        seq = [mf[0], e[0], e[1]]
        for i in range(7):
            seq += [e[2*i+2], c[i], e[2*i+3]]
            if i == 0: seq += extra[:1]
            if i == 1: seq += [mf[1]]
            if i == 2: seq += extra[1:]
            if i == 4: seq += [mf[2]]
        seq += [filler, c[7]]
        for x in seq: a(x)
    a.label(f"{name}_aloop")
    a(f"""s_cmp_lg_u32 s40, 1
    s_cbranch_scc1 {name}_nobar
    s_barrier""")
    a.label(f"{name}_nobar")
    mm = "v_mfma_f32_32x32x16_bf16"
    for u in range(4):
        b = u & 1
        K0, K1_, V0, V1 = KK + 4*b, KK + 4*(1-b), VV + 8*b, VV + 8*(1-b)
        phase(SA, PA,
              [f"{mm} {v(SB,16)}, {v(K0,4)}, {v(QB_,4)}, 0",
               f"{mm} {v(OB,16)}, {v(V1,4)}, {v(PB,4)}, {v(OB,16)}",
               f"{mm} {v(OB,16)}, {v(V1+4,4)}, {v(PB+4,4)}, {v(OB,16)}"],
              [], "s_waitcnt lgkmcnt(0)")
        phase(SB, PB,
              [f"{mm} {v(SA,16)}, {v(K1_,4)}, {v(QA,4)}, 0",
               f"{mm} {v(OA,16)}, {v(V0,4)}, {v(PA,4)}, {v(OA,16)}",
               f"{mm} {v(OA,16)}, {v(V0+4,4)}, {v(PA+4,4)}, {v(OA,16)}"],
              [f"ds_read_b128 {v(V1,4)}, {v(vV)} offset:{u * 1024}",
               f"ds_read_b128 {v(V1+4,4)}, {v(vV)} offset:{u * 1024 + 256}"],
              f"ds_read_b128 {v(K0,4)}, {v(vK)} offset:{(u + 2) * 1024}")
    a(f"""v_add_u32 {v(vK)}, 0x1000, {v(vK)}
    v_add_u32 {v(vV)}, {v(vST)}, {v(vV)}
    s_add_u32 s40, s40, 1
    s_cmp_lt_u32 s40, 8
    s_cbranch_scc1 {name}_aloop
    {mm} {v(OB,16)}, {v(VV+8,4)}, {v(PB,4)}, {v(OB,16)}
    {mm} {v(OB,16)}, {v(VV+12,4)}, {v(PB+4,4)}, {v(OB,16)}
    s_mul_i32 s33, {s(sWV)}, 2304
    s_add_u32 s33, s33, {K2_X}
    s_xor_b32 s34, {s(sWV)}, 4
    s_mul_i32 s34, s34, 2304
    s_add_u32 s34, s34, {K2_X}
    v_add_u32 v5, s33, v1
    v_lshl_add_u32 v7, v0, 2, s33""")
    lds_wait(a, f"{name}_aw", 6, PA, 42, 16)
    a(f"""ds_write_b128 v5, {v(OB,4)}
    ds_write_b128 v5, {v(OB+4,4)} offset:1024
    ds_write_b32 v7, {v(OB+8)} offset:2048
    v_add_u32 v5, s34, v1
    v_lshl_add_u32 v7, v0, 2, s34
    s_waitcnt lgkmcnt(0)
    s_barrier
    ds_read_b128 {v(SB,4)}, v5
    ds_read_b128 {v(SB+4,4)}, v5 offset:1024
    ds_read_b32 {v(SB+8)}, v7 offset:2048
    s_lshl_b32 s33, s29, 5
    s_add_u32 s33, s33, {s(sH)}
    s_lshl_b32 s33, s33, 10
    s_add_u32 s33, s33, {OF}
    s_mov_b32 s34, {fbits(2.0**-60)}
    s_mov_b32 s35, {fbits(2.0**60)}
    s_mov_b32 s36, 0x7f800000
    s_waitcnt lgkmcnt(0)""")
    for i in range(9): a(f"v_add_f32 {v(OA+i)}, {v(OA+i)}, {v(SB+i)}")
    a(f"v_add_f32 v5, abs({v(OA)}), abs({v(OA+1)})")
    for i in range(2, 8): a(f"v_add_f32 v5, v5, abs({v(OA+i)})")
    a(f"""v_cmp_nlt_f32 s[44:45], s34, {v(OA+8)}
    v_cmp_ngt_f32 s[46:47], s35, {v(OA+8)}
    v_cmp_ngt_f32 vcc, s36, v5
    s_nop 0
    s_or_b64 s[44:45], s[44:45], s[46:47]
    s_or_b64 s[44:45], s[44:45], vcc""")
    if force_fallback: a(f"s_branch {name}_slow")
    else: a(f"s_cbranch_scc1 {name}_slow")
    a.label(f"{name}_fin")
    a(f"v_rcp_f32 v6, {v(OA+8)}\ns_nop 0")
    for i in range(4):
        r = v(OA + 2*i, 2)
        a(f"v_pk_mul_f32 {r}, {r}, v[6:7] op_sel_hi:[1,0]")
    for i in range(4): a(f"v_cvt_pk_bf16_f32 {v(PA+i)}, {v(OA+2*i)}, {v(OA+2*i+1)}")
    a(f"""buffer_store_dwordx4 {v(PA,4)}, v1, {s(sWS,4)}, s33 offen
    s_endpgm""")
    a.label(f"{name}_slow")
    vM, vN, vT = 5, 6, 7
    a(f"""v_mov_b32 {v(vK)}, v1
    v_lshlrev_b32 v5, 3, {v(vST)}
    s_add_u32 s34, s28, 1
    v_mul_lo_u32 v5, v5, s34
    v_lshrrev_b32 v6, 2, {v(vST)}
    v_add_u32 v5, v5, v6
    v_sub_u32 {v(vV)}, {v(vV)}, v5
    v_lshrrev_b32 {v(vST)}, 2, {v(vST)}
    v_mov_b32 {v(vM)}, 0xff800000
    s_mov_b32 s40, 0""")
    for i in range(16): a(f"v_mov_b32 {v(OA + i)}, 0")
    a.label(f"{name}_sloop")
    a(f"""ds_read_b128 {v(KK,4)}, {v(vK)}
    ds_read_b128 {v(VV,4)}, {v(vV)}
    ds_read_b128 {v(VV+4,4)}, {v(vV)} offset:256
    v_add_u32 {v(vK)}, 0x400, {v(vK)}
    v_add_u32 {v(vV)}, {v(vST)}, {v(vV)}
    s_waitcnt lgkmcnt(0)
    {mm} {v(SA,16)}, {v(KK,4)}, {v(QA,4)}, 0
    s_nop 11
    v_max3_f32 {v(vN)}, {v(SA)}, {v(SA+1)}, {v(vM)}""")
    for i in range(1, 8): a(f"v_max3_f32 {v(vN)}, {v(SA+2*i)}, {v(SA+2*i+1)}, {v(vN)}")
    a(f"""v_mov_b32 {v(vT)}, {v(vN)}
    s_nop 1
    v_permlane32_swap_b32 {v(vT)}, {v(vN)}
    s_nop 1
    v_max_f32 {v(vN)}, {v(vN)}, {v(vT)}
    v_sub_f32 {v(vT)}, {v(vM)}, {v(vN)}
    v_exp_f32 {v(vT)}, {v(vT)}
    v_mov_b32 {v(vM)}, {v(vN)}""")
    for i in range(16): a(f"v_sub_f32 {v(SA+i)}, {v(SA+i)}, {v(vN)}")
    for i in range(16): a(f"v_mul_f32 {v(OA+i)}, {v(OA+i)}, {v(vT)}")
    for i in range(16): a(f"v_exp_f32 {v(SA+i)}, {v(SA+i)}")
    a("s_nop 0")
    for i in range(8): a(f"v_cvt_pk_bf16_f32 {v(PA+i)}, {v(SA+2*i)}, {v(SA+2*i+1)}")
    a(f"""s_add_u32 s40, s40, 1
    s_cmp_lt_u32 s40, 64
    {mm} {v(OA,16)}, {v(VV,4)}, {v(PA,4)}, {v(OA,16)}
    {mm} {v(OA,16)}, {v(VV+4,4)}, {v(PA+4,4)}, {v(OA,16)}
    s_nop 11
    s_cbranch_scc1 {name}_sloop
    s_branch {name}_fin""")
    a.label(f"{name}_end")
    a("s_endpgm")
    return a.text(), 136

K3_T = 131072
K3_LDS = K3_T + 4 * 2560

def gen_k3(name="k3_kernel"):
    a = Asm()
    sWS, sX, sO = 20, 24, 28
    sTM, sTN, sWV = 32, 33, 34
    a(f"""s_cmp_ge_u32 s2, 256
    s_cbranch_scc1 {name}_end
    s_load_dwordx2 s[16:17], s[0:1], 64
    s_load_dwordx2 s[4:5], s[0:1], 0
    s_load_dwordx2 s[6:7], s[0:1], 48
    v_lshrrev_b32 v1, 6, v0
    v_and_b32 v0, 63, v0
    s_and_b32 s3, s2, 7
    v_readfirstlane_b32 {s(sWV)}, v1
    s_lshl_b32 s3, s3, 2
    s_bfe_u32 {s(sTM)}, s2, 0x20003
    s_add_u32 {s(sTM)}, {s(sTM)}, s3
    s_lshr_b32 {s(sTN)}, s2, 5
    v_lshlrev_b32 v1, 4, v0
    s_lshr_b32 s35, {s(sWV)}, 1
    s_and_b32 s36, {s(sWV)}, 1
    s_cmp_eq_u32 s35, 0
    s_cselect_b32 s37, {s(sTM)}, {s(sTN)}
    s_mov_b32 s38, {WOF}
    s_cselect_b32 s38, {OF}, s38
    s_lshl_b32 s37, s37, 1
    s_add_u32 s37, s37, s36
    s_lshl_b32 s37, s37, 15
    s_add_u32 s37, s37, s38
    s_lshl_b32 s38, {s(sWV)}, 15
    s_lshl_b32 s39, {s(sTM)}, 3
    s_add_u32 s39, s39, {s(sTN)}
    s_lshl_b32 s39, s39, 2
    s_add_u32 s39, s39, {s(sWV)}
    s_lshl_b32 s39, s39, 11
    s_add_u32 s39, s39, {FF}
    s_lshl_b32 s40, {s(sTM)}, 1
    s_add_u32 s40, s40, s36
    s_lshl_b32 s41, s40, 7
    s_add_u32 s41, s41, {RS}
    s_lshl_b32 s40, s40, 15
    s_lshl_b32 s42, {s(sTN)}, 1
    s_add_u32 s42, s42, s35
    s_lshl_b32 s42, s42, 6
    s_add_u32 s40, s40, s42
    s_add_u32 s43, s40, 16384
    v_and_b32 v2, 31, v0
    v_lshlrev_b32 v3, 2, v2
    v_lshrrev_b32 v4, 2, v0
    v_and_b32 v5, 3, v0
    v_lshlrev_b32 v5, 4, v5
    v_lshl_add_u32 v6, v4, 10, v5
    s_waitcnt lgkmcnt(0)""")
    srd(a, sWS, 16, WS_BYTES)
    FB, RR, XB, G, ACC, FR = 8, 16, 20, 28, 44, 60
    def dma(g):
        a(f"s_add_u32 m0, s38, {g * 4096}\ns_add_u32 s44, s37, {g * 4096}")
        for i in range(4):
            a(f"buffer_load_dwordx4 v1, {s(sWS,4)}, s44 offen offset:{i * 1024} lds")
    dma(0); dma(1)
    a(f"""buffer_load_dwordx4 {v(FB,4)}, v1, {s(sWS,4)}, s39 offen
    buffer_load_dwordx4 {v(FB+4,4)}, v1, {s(sWS,4)}, s39 offen offset:1024
    buffer_load_dword {v(RR)}, v3, {s(sWS,4)}, s41 offen""")
    for g in range(2, 8): dma(g)
    srd(a, sX, 4, 2 * MB); srd(a, sO, 6, 2 * MB)
    a(f"""buffer_load_dwordx4 {v(XB,4)}, v6, {s(sX,4)}, s40 offen
    buffer_load_dwordx4 {v(XB+4,4)}, v6, {s(sX,4)}, s43 offen
    s_lshl_b32 s45, s36, 15
    s_lshl_b32 s46, s35, 15
    s_add_u32 s46, s46, 65536
    v_add_u32 v17, s45, v1
    v_add_u32 v18, s46, v1
    s_mul_i32 s45, {s(sWV)}, 2560
    s_add_u32 s45, s45, {K3_T}
    v_mul_u32_u24 v2, 80, v2
    v_lshrrev_b32 v3, 5, v0
    v_lshl_add_u32 v2, v3, 3, v2
    v_add_u32 v2, s45, v2
    v_mul_u32_u24 v4, 80, v4
    v_add3_u32 v4, v4, v5, s45""")
    mm = "v_mfma_f32_32x32x16_bf16"
    silu = []
    for i in range(8):
        silu += [f"v_lshlrev_b32 {v(G+2*i)}, 16, {v(FB+i)}", f"v_and_b32 {v(G+2*i+1)}, 0xffff0000, {v(FB+i)}"]
    for i in range(8):
        r = v(G+2*i, 2)
        silu += [f"v_pk_mul_f32 {r}, {r}, {v(RR,2)} op_sel_hi:[1,0]"]
    T = 92
    for i in range(16): silu += [f"v_mul_f32 {v(T+i)}, {fbits(-LOG2E)}, {v(G+i)}"]
    for i in range(16): silu += [f"v_exp_f32 {v(T+i)}, {v(T+i)}"]
    for i in range(16): silu += [f"v_add_f32 {v(T+i)}, 1.0, {v(T+i)}"]
    for i in range(16): silu += [f"v_rcp_f32 {v(T+i)}, {v(T+i)}"]
    for i in range(16): silu += [f"v_mul_f32 {v(G+i)}, {v(G+i)}, {v(T+i)}"]
    for c in range(4):
        a(f"s_waitcnt vmcnt({(29, 18, 10, 2)[c]})\ns_barrier")
        rd = []
        for k in range(8):
            ks = 8*c + k
            rd.append((f"ds_read_b128 {v(FR + 8*(k&3), 4)}, v18 offset:{ks * 1024}", f"ds_read_b128 {v(FR + 8*(k&3) + 4, 4)}, v17 offset:{ks * 1024}"))
        for k in range(4): a(rd[k][0]); a(rd[k][1])
        for k in range(8):
            a(f"s_waitcnt lgkmcnt({6 if k < 5 else 2 * (7 - k)})")
            cin = "0" if (c == 0 and k == 0) else v(ACC,16)
            a(f"{mm} {v(ACC,16)}, {v(FR + 8*(k&3), 4)}, {v(FR + 8*(k&3) + 4, 4)}, {cin}")
            if k < 4: a(rd[k+4][0]); a(rd[k+4][1])
        if c == 0:
            a("s_waitcnt vmcnt(26)")
            for x in silu: a(x)
    a("s_nop 11")
    for i in range(8):
        r = v(ACC+2*i, 2)
        a(f"v_pk_mul_f32 {r}, {r}, {v(G+2*i, 2)}")
    for i in range(8): a(f"v_cvt_pk_bf16_f32 {v(FB+i)}, {v(ACC+2*i)}, {v(ACC+2*i+1)}")
    for i in range(4): a(f"ds_write_b64 v2, {v(FB+2*i, 2)} offset:{16*i}")
    a(f"""ds_read_b128 {v(FR,4)}, v4
    ds_read_b128 {v(FR+4,4)}, v4 offset:1280
    s_waitcnt vmcnt(0)""")
    for i in range(8):
        a(f"v_lshlrev_b32 {v(G+2*i)}, 16, {v(XB+i)}\nv_and_b32 {v(G+2*i+1)}, 0xffff0000, {v(XB+i)}")
    a("s_waitcnt lgkmcnt(0)")
    for i in range(8):
        a(f"v_lshlrev_b32 {v(T+2*i)}, 16, {v(FR+i)}\nv_and_b32 {v(T+2*i+1)}, 0xffff0000, {v(FR+i)}")
    for i in range(8):
        a(f"v_pk_add_f32 {v(G+2*i,2)}, {v(G+2*i,2)}, {v(T+2*i,2)}")
    for i in range(8): a(f"v_cvt_pk_bf16_f32 {v(FB+i)}, {v(G+2*i)}, {v(G+2*i+1)}")
    a(f"""buffer_store_dwordx4 {v(FB,4)}, v6, {s(sO,4)}, s40 offen
    buffer_store_dwordx4 {v(FB+4,4)}, v6, {s(sO,4)}, s43 offen""")
    a.label(f"{name}_end")
    a("s_endpgm")
    return a.text(), 108

if __name__ == "__main__":
    for g, n in ((gen_k2, "k2"), (gen_k3, "k3")):
        t, nv = g()
        for e in lint(t, n): print(e)
        print(len(t.split("\n")), "lines")
```

```python
import sys
from asmlib import *
import k1, k2
NAME = "recurrent_scan__softmax_full_mha__dense_activation_relu__prompt"
HDR = open(f"cdna_kernels/{NAME}.s.ref").read().split("; Override launch")[0]

def assemble(kernels, path, extra_launches=()):
    out = HDR
    for (n, t, nv, g, b, l) in kernels:
        out += f"; @launch kernel={n} grid=({g},1,1) block=({b},1,1) lds={l}\n"
    for ln in extra_launches: out += ln + "\n"
    out += '.amdgcn_target "amdgcn-amd-amdhsa--gfx950"\n'
    done = set()
    for (n, t, nv, g, b, l) in kernels:
        if n in done: continue
        done.add(n)
        errs = lint(t, n)
        for e in errs: print(e)
        assert not errs
        out += khead(n) + t + kdesc(n, nv)
    open(path, "w").write(out)

def default(path, **kw):
    t1, n1 = k1.gen_k1(); t2, n2 = k2.gen_k2(**kw); t3, n3 = k2.gen_k3()
    assemble([("k1_kernel", t1, n1, 256, 512, k1.K1_LDS), ("k2_kernel", t2, n2, 256, 768, k2.K2_LDS), ("k3_kernel", t3, n3, 256, 256, k2.K3_LDS)], path)

if __name__ == "__main__":
    default(f"cdna_kernels/{NAME}.s")
```

```python
import re

def v(i, n=1):
    return f"v{i}" if n == 1 else f"v[{i}:{i+n-1}]"
def s(i, n=1):
    return f"s{i}" if n == 1 else f"s[{i}:{i+n-1}]"

class Asm:
    def __init__(self):
        self.lines = []
    def __call__(self, txt):
        for ln in txt.split("\n"):
            ln = ln.strip()
            if ln:
                self.lines.append(ln)
    def label(self, name):
        self.lines.append(name + ":")
    def text(self):
        out = []
        for ln in self.lines:
            if ln.endswith(":") or ln.startswith("."):
                out.append(ln)
            else:
                out.append("    " + ln)
        return "\n".join(out) + "\n"

REG = re.compile(r"\b([vsa])(?:(\d+)\b|\[(\d+):(\d+)\])")
TRANS = ("v_exp_", "v_log_", "v_rcp_", "v_rsq_", "v_sqrt_", "v_sin_", "v_cos_")

def regs_of(op):
    op = op.strip()
    r = set()
    for m in REG.finditer(op):
        k = m.group(1)
        if m.group(2) is not None:
            r.add((k, int(m.group(2))))
        else:
            for i in range(int(m.group(3)), int(m.group(4)) + 1):
                r.add((k, i))
    if re.search(r"\bvcc\b", op): r.add(("s", "vcc"))
    if re.search(r"\bvcc_lo\b|\bvcc_hi\b", op): r.add(("s", "vcc"))
    if re.search(r"\bm0\b", op): r.add(("s", "m0"))
    if re.search(r"\bexec(_lo|_hi)?\b", op): r.add(("s", "exec"))
    return r

def split_ops(rest):
    ops = []; depth = 0; cur = ""
    for ch in rest:
        if ch == "[": depth += 1
        if ch == "]": depth -= 1
        if ch == "," and depth == 0:
            ops.append(cur.strip()); cur = ""
        else:
            cur += ch
    if cur.strip(): ops.append(cur.strip())
    return ops

class Ins:
    def __init__(self, txt):
        self.txt = txt
        t = txt.split(";")[0].strip()
        p = t.split(None, 1)
        self.op = p[0]
        rest = p[1] if len(p) > 1 else ""
        self.ops = split_ops(rest)
        op = self.op
        self.w = set(); self.r = set()
        self.kind = "other"
        self.mfma = op.startswith("v_mfma") or op.startswith("v_smfmac")
        self.valu = op.startswith("v_") and not self.mfma
        self.trans = op.startswith(TRANS)
        self.dot = op.startswith("v_dot")
        self.salu = op.startswith("s_")
        self.vmem = op.startswith(("buffer_", "global_"))
        self.ds = op.startswith("ds_")
        self.smem = op.startswith(("s_load", "s_memtime", "s_memrealtime", "s_buffer_load"))
        self.ldsdma = self.vmem and (" lds" in t or "_lds_" in op)
        self.dpp = "dpp" in op or "row_" in t or "quad_perm" in t
        self.sdwa = "sdwa" in op
        o = self.ops
        if self.mfma:
            self.D = regs_of(o[0]); self.A = regs_of(o[1]); self.B = regs_of(o[2]); self.C = regs_of(o[3].split()[0])
            if op.startswith("v_smfmac"):
                self.A = self.A | self.C; self.C = set(self.D)
            self.w = self.D; self.r = self.A | self.B | self.C
            self.passes = 8 if "32x32" in op else 4
        elif self.valu:
            if op.startswith("v_cmp"):
                self.w = regs_of(o[0]); self.r = set().union(*[regs_of(x) for x in o[1:]])
                if op.startswith("v_cmpx"): self.w.add(("s", "exec"))
            elif op.startswith(("v_permlane32_swap", "v_permlane16_swap", "v_swap")):
                self.w = regs_of(o[0]) | regs_of(o[1]); self.r = set(self.w)
            elif op.startswith(("v_add_co", "v_sub_co", "v_addc_co", "v_subb_co")):
                self.w = regs_of(o[0]) | regs_of(o[1]); self.r = set().union(*[regs_of(x) for x in o[2:]])
            elif op == "v_nop":
                pass
            else:
                self.w = regs_of(o[0]); self.r = set().union(*[regs_of(x) for x in o[1:]]) if len(o) > 1 else set()
                if op.startswith(("v_fmac", "v_dot2c", "v_pk_fmac", "v_writelane")) or "UNUSED_PRESERVE" in t:
                    self.r |= self.w
                if op.startswith("v_cndmask") and len(o) == 3: self.r.add(("s", "vcc"))
        elif self.vmem:
            if op.startswith(("buffer_inv", "buffer_wbl2")):
                pass
            elif "load" in op and not self.ldsdma:
                self.w = regs_of(o[0]); self.r = set().union(*[regs_of(x) for x in o[1:]])
                if "d16" in op: self.r |= self.w
            elif "atomic" in op and " sc0" in t:
                if op.startswith("buffer_"):
                    self.w = regs_of(o[0]); self.r = set().union(*[regs_of(x) for x in o])
                else:
                    self.w = regs_of(o[0]); self.r = set().union(*[regs_of(x) for x in o[1:]])
            else:
                self.r = set().union(*[regs_of(x) for x in o])
                if self.ldsdma: self.r.add(("s", "m0"))
            self.wide_store = ("store" in op) and ("x4" in op or "x3" in op)
            if self.wide_store:
                self.sdata = regs_of(o[0]) if op.startswith("buffer_") else regs_of(o[1])
        elif self.ds:
            if op.startswith(("ds_read", "ds_bpermute", "ds_permute", "ds_swizzle")) or "_rtn" in op:
                self.w = regs_of(o[0]); self.r = set().union(*[regs_of(x) for x in o[1:]])
            else:
                self.r = set().union(*[regs_of(x) for x in o])
        elif self.salu:
            if op.startswith(("s_cmp", "s_cbranch", "s_branch", "s_waitcnt", "s_nop", "s_barrier", "s_endpgm", "s_setprio", "s_sleep", "s_bitcmp")):
                self.r = set().union(*[regs_of(x) for x in o]) if o else set()
                if op.startswith("s_cbranch_vcc"): self.r.add(("s", "vcc"))
            else:
                self.w = regs_of(o[0]); self.r = set().union(*[regs_of(x) for x in o[1:]]) if len(o) > 1 else set()
                if "saveexec" in op: self.w.add(("s", "exec"))
                if op.startswith(("s_addk", "s_mulk", "s_cmov")): self.r |= self.w
        self.states = 1
        if op == "s_nop": self.states = int(o[0], 0) + 1
        self.target = o[0] if op.startswith(("s_cbranch", "s_branch")) else None

def vonly(x): return {r for r in x if r[0] in "va"}
def sonly(x): return {r for r in x if r[0] == "s"}

def need(p, c):
    n = 0
    if p.valu and not p.dot:
        wv = vonly(p.w); ws = sonly(p.w)
        if c.mfma and wv & c.r: n = max(n, 2)
        if p.trans and c.valu and not c.trans and wv & c.r: n = max(n, 1)
        if p.trans and c.trans and wv & c.r: n = max(n, 1)
        if c.op.startswith("v_permlane") and wv & c.r: n = max(n, 2)
        if c.op.startswith(("v_readlane", "v_readfirstlane")) and wv & c.r: n = max(n, 1)
        if c.dpp and wv & c.r: n = max(n, 2)
        if ws:
            if c.valu and ws & c.r: n = max(n, 2)
            if c.vmem and ws & c.r: n = max(n, 5)
            if c.salu and ws & c.r: n = max(n, 1)
            if ("s", "exec") in ws and (c.mfma or c.dpp or c.op.startswith(("v_permlane", "v_readlane", "v_readfirstlane"))): n = max(n, 5)
        if p.sdwa and c.valu and wv & (c.r | c.w): n = max(n, 1)
    if p.dot:
        wv = vonly(p.w)
        if c.dot and c.op == p.op:
            srcab = set().union(*[regs_of(x) for x in c.ops[1:3]])
            if wv & srcab: n = max(n, 3)
        elif wv & (c.r | c.w): n = max(n, 3)
    if p.mfma:
        big = {8: 12, 4: 8}[p.passes]
        if c.mfma:
            if p.D & (c.A | c.B): n = max(n, big)
            if p.D & c.C and not (p.D == c.C and p.passes == c.passes): n = max(n, big - 2)
            if p.D & c.D and not p.D & c.C: n = max(n, big - 2)
        elif (c.valu or c.vmem or c.ds) and p.D & (c.r | c.w): n = max(n, big)
        if c.valu and p.C & c.w: n = max(n, {8: 7, 4: 3}[p.passes])
    if p.salu and ("s", "m0") in p.w and c.ldsdma: n = max(n, 1)
    if p.vmem and getattr(p, "wide_store", False):
        if p.sdata & c.w: n = max(n, 2 if (c.valu or c.mfma) else 1)
    return n

def lint(text, name="?"):
    ins = []; labels = {}
    for ln in text.split("\n"):
        t = ln.split(";")[0].strip()
        if not t or t.startswith("."): continue
        if t.endswith(":"):
            labels[t[:-1]] = len(ins); continue
        ins.append(Ins(t))
    def succ(i):
        x = ins[i]
        if x.op == "s_endpgm": return []
        if x.op == "s_branch": return [labels[x.target]]
        r = [i + 1] if i + 1 < len(ins) else []
        if x.target: r.append(labels[x.target])
        return r
    errs = []
    for i, p in enumerate(ins):
        if not (p.valu or p.mfma or p.vmem or (p.salu and ("s", "m0") in p.w)): continue
        stack = [(j, 0) for j in succ(i)]; seen = set()
        while stack:
            j, d = stack.pop()
            if (j, d) in seen or d > 13: continue
            seen.add((j, d))
            c = ins[j]
            n = need(p, c)
            if n > d: errs.append(f"[{name}] hazard: need {n} have {d}: '{p.txt}' -> '{c.txt}'")
            for k in succ(j): stack.append((k, d + c.states))
    seen = set(); stack = [(0, (), (), False)]
    steps = 0
    while stack:
        i, vm, lg, sm = stack.pop()
        key = (i, vm, lg, sm)
        if key in seen: continue
        seen.add(key); steps += 1
        if steps > 400000:
            errs.append(f"[{name}] waitcnt walk gave up"); break
        x = ins[i]
        touched = x.r | x.w
        for q, nm in ((vm, "vm"), (lg, "lgkm")):
            for dst in q:
                if dst and set(dst) & touched:
                    if (x.vmem and nm == "vm" or x.ds and nm == "lgkm") and not set(dst) & x.r: continue
                    errs.append(f"[{name}] missing {nm} wait: '{x.txt}' touches {sorted(set(dst) & touched, key=str)[:2]}")
        if x.op == "s_waitcnt":
            t = " ".join(x.ops)
            m = re.search(r"vmcnt\((\d+)\)", t)
            if m:
                n = int(m.group(1)); vm = vm[len(vm) - n:] if n < len(vm) else vm
                if n == 0: vm = ()
            m = re.search(r"lgkmcnt\((\d+)\)", t)
            if m:
                n = int(m.group(1))
                if n == 0: lg = (); sm = False
                elif not sm and n < len(lg): lg = lg[len(lg) - n:]
        elif x.vmem and not x.op.startswith(("buffer_inv", "buffer_wbl2")):
            vm = (vm + (tuple(sorted(x.w, key=str)),))[-64:]
        elif x.ds:
            lg = (lg + (tuple(sorted(x.w, key=str)),))[-32:]
        elif x.smem:
            lg = (lg + (tuple(sorted(x.w, key=str)),))[-32:]; sm = True
        for k in succ(i): stack.append((k, vm, lg, sm))
    out = []
    for e in errs:
        if e not in out: out.append(e)
    return out

def kdesc(name, vgpr, sgpr=96, accum=None):
    if accum is None: accum = (vgpr + 3) // 4 * 4
    return f""".section .rodata,"a"
.p2align 6
.amdhsa_kernel {name}
  .amdhsa_next_free_vgpr {vgpr}
  .amdhsa_next_free_sgpr {sgpr}
  .amdhsa_accum_offset {accum}
  .amdhsa_group_segment_fixed_size 0
  .amdhsa_kernarg_size 72
  .amdhsa_user_sgpr_count 2
  .amdhsa_user_sgpr_kernarg_segment_ptr 1
  .amdhsa_system_sgpr_workgroup_id_x 1
  .amdhsa_float_denorm_mode_32 3
.end_amdhsa_kernel
"""

def khead(name):
    return f""".text
.globl {name}
.p2align 8
.type {name},@function
{name}:
"""


TRACE = False
TR_BASE = 32 << 20
def stamp(a, i):
    if not TRACE: return
    if i == 0:
        a("s_memrealtime s[64:65]")
        for k in range(1, 13): a(f"s_mov_b32 s{68 + 2*k}, 0")
    a(f"s_memtime s[{68 + 2*i}:{69 + 2*i}]\ns_waitcnt lgkmcnt(0)")
def stamp_end(a, kidx, swave, addwave=0):
    if not TRACE: return
    a(f"""s_memrealtime s[66:67]
    s_memtime s[94:95]
    s_waitcnt lgkmcnt(0)
    s_mov_b32 s60, s16
    s_mov_b32 s61, s17
    s_mov_b32 s62, 0x4000000
    s_mov_b32 s63, 0x20000
    s_lshl_b32 s65, s2, 4
    s_add_u32 s65, s65, s{swave}
    s_add_u32 s65, s65, {addwave}
    s_lshl_b32 s65, s65, 6
    s_add_u32 s65, s65, {TR_BASE + (kidx << 20)}
    s_mov_b64 exec, 1
    v_mov_b32 v0, 0""")
    regs = [64, 66] + [68 + 2*k for k in range(14)]
    for k, r in enumerate(regs):
        a(f"v_mov_b32 v1, s{r}\nbuffer_store_dword v1, v0, s[60:63], s65 offen offset:{4*k}")
```

```python
import sys
from asmlib import *
import k1, k2
NAME = "recurrent_scan__softmax_full_mha__dense_activation_relu__prompt"
HDR = open(f"cdna_kernels/{NAME}.s.ref").read().split("; Override launch")[0]

def assemble(kernels, path, extra_launches=()):
    out = HDR
    for (n, t, nv, g, b, l) in kernels:
        out += f"; @launch kernel={n} grid=({g},1,1) block=({b},1,1) lds={l}\n"
    for ln in extra_launches: out += ln + "\n"
    out += '.amdgcn_target "amdgcn-amd-amdhsa--gfx950"\n'
    done = set()
    for (n, t, nv, g, b, l) in kernels:
        if n in done: continue
        done.add(n)
        errs = lint(t, n)
        if "trace_" not in path:
            for e in errs: print(e)
            assert not errs
        out += khead(n) + t + kdesc(n, nv)
    open(path, "w").write(out)

def default(path, k1kw={}, **kw):
    t1, n1 = k1.gen_k1(**k1kw); t2, n2 = k2.gen_k2(**kw); t3, n3 = k2.gen_k3()
    assemble([("k1_kernel", t1, n1, 256, 512, k1.K1_LDS), ("k2_kernel", t2, n2, 256, 768, k2.K2_LDS), ("k3_kernel", t3, n3, 256, 256, k2.K3_LDS)], path)

if __name__ == "__main__":
    import asmlib
    default(f"cdna_kernels/{NAME}.s")
    default(f"slow.s", force_fallback=True)
    asmlib.TRACE = True
    default(f"trace.s")
    default(f"trace_nodot.s", k1kw=dict(nodot=True))
    default(f"trace_nord.s", k1kw=dict(nord=True))
    default(f"trace_nordnodot.s", k1kw=dict(nord=True, nodot=True))
    default(f"trace_nomm.s", k1kw=dict(nomm=True, nodot=True))
```

```python
from asmlib import *
import asmlib

MB = 1 << 20
QF, KF, VF, HF, OF, FF, W2F, WOF, RS = 0, 2*MB, 4*MB, 6*MB, 13*MB, 15*MB, 17*MB, 19*MB, 20*MB
WS_BYTES = 21 * MB
LOG2E = 1.4426950408889634
import struct
def fbits(x): return "0x%08x" % struct.unpack("<I", struct.pack("<f", x))[0]

def srd(a, d, base, nbytes):
    a(f"""s_mov_b32 {s(d)}, {s(base)}
    s_mov_b32 {s(d+1)}, {s(base+1)}
    s_mov_b32 {s(d+2)}, {hex(nbytes)}
    s_mov_b32 {s(d+3)}, 0x20000""")

K1_LDS = 151552
K1_XT = 120 * 1024
K1_CS = 140 * 1024
K1_RX = 147 * 1024

def gen_k1(name="k1_kernel", nodot=False, nord=False, nomm=False):
    a = Asm()
    sX, sW, sWS, sT2, sTO = 20, 24, 28, 32, 36
    sRB, sCOL, sWV = 40, 41, 42
    a(f"""s_cmp_ge_u32 s2, 256
    s_cbranch_scc1 {name}_end""")
    stamp(a, 0)
    a(f"""s_load_dwordx4 s[4:7], s[0:1], 0
    s_load_dwordx2 s[8:9], s[0:1], 16
    s_load_dwordx4 s[12:15], s[0:1], 32
    s_load_dwordx2 s[16:17], s[0:1], 64
    v_lshrrev_b32 v1, 6, v0
    v_and_b32 v0, 63, v0
    s_and_b32 s3, s2, 1
    v_readfirstlane_b32 {s(sWV)}, v1
    s_lshl_b32 s3, s3, 3
    s_bfe_u32 {s(sRB)}, s2, 0x30004
    s_add_u32 {s(sRB)}, {s(sRB)}, s3
    s_bfe_u32 s3, s2, 0x20001
    s_lshl_b32 s3, s3, 1
    s_lshr_b32 {s(sCOL)}, s2, 7
    s_add_u32 {s(sCOL)}, {s(sCOL)}, s3
    s_cmp_lt_u32 {s(sWV)}, 4
    s_cbranch_scc1 {name}_cons
    s_sub_u32 {s(sWV)}, {s(sWV)}, 4""")
    vX0, vX1, vW, vT, vTR = 2, 3, 4, 5, 6
    a(f"""v_lshrrev_b32 v7, 3, v0
    v_lshlrev_b32 v7, 10, v7
    v_and_b32 v8, 7, v0
    v_lshrrev_b32 v9, 4, v0
    v_xor_b32 v8, v8, v9
    v_lshl_add_u32 {v(vX0)}, v8, 4, v7
    v_xor_b32 {v(vX1)}, 64, {v(vX0)}
    v_lshrrev_b32 v7, 2, v0
    v_and_b32 v8, 3, v0
    v_lshlrev_b32 v8, 4, v8
    s_lshl_b32 s43, {s(sRB)}, 2
    s_add_u32 s43, s43, {s(sWV)}
    s_lshl_b32 s43, s43, 15
    s_lshl_b32 s44, {s(sWV)}, 12
    s_bitcmp1_b32 s2, 3
    s_waitcnt lgkmcnt(0)""")
    srd(a, sX, 4, 2 * MB)
    a(f"s_cbranch_scc0 {name}_loadA")
    for typ in ("B", "A"):
        NT = 7 if typ == "B" else 6
        ldw = 3584 if typ == "B" else 3072
        slot = 16384 + NT * 4096
        if typ == "A": a.label(f"{name}_loadA")
        sSX, sMX, sSW, sMW, sTmp = 43, 44, 45, 46, 47
        if typ == "B":
            srd(a, sW, 12, 512 * 3584)
            a(f"s_mul_i32 {s(sSW)}, {s(sCOL)}, 448")
        else:
            srd(a, sW, 6, 512 * 3072)
            a(f"s_lshl_b32 {s(sSW)}, {s(sCOL)}, 7")
        a(f"""s_mul_i32 {s(sTmp)}, {s(sWV)}, {16 * ldw}
        s_add_u32 {s(sSW)}, {s(sSW)}, {s(sTmp)}
        s_mul_i32 {s(sMW)}, {s(sWV)}, {NT * 1024}
        s_movk_i32 {s(sTmp)}, {ldw}
        v_mad_u32_u24 {v(vW)}, v7, {s(sTmp)}, v8""")
        def coloff(nt):
            return nt * 64 if typ == "B" else (nt >> 1) * 1024 + (nt & 1) * 64
        def issue(st):
            sb = (st % 3) * slot
            for jj in range(4):
                a(f"""s_add_u32 m0, {s(sMX)}, {sb + jj * 1024}
                s_add_u32 {s(sTmp)}, {s(sSX)}, {st * 128 + jj * 8192}
                buffer_load_dwordx4 {v(vX1 if jj & 1 else vX0)}, {s(sX,4)}, {s(sTmp)} offen lds""")
            for nt in range(NT):
                off = coloff(nt)
                a(f"s_add_u32 m0, {s(sMW)}, {sb + 16384 + nt * 1024 - off}")
                if nt == 0: a(f"s_add_u32 {s(sTmp)}, {s(sSW)}, {st * 64 * ldw}")
                else: a("s_nop 0")
                a(f"buffer_load_dwordx4 {v(vW)}, {s(sW,4)}, {s(sTmp)} offen offset:{off} lds")
        n = 4 + NT
        E = 5 if typ == "A" else 0
        issue(0); issue(1); issue(2)
        if typ == "A":
            srd(a, sT2, 14, 1792 * 1024); srd(a, sTO, 8, 512 * 1024); srd(a, sWS, 16, WS_BYTES)
            a(f"""v_lshl_add_u32 {v(vT)}, v7, 10, v8
            s_mul_i32 s48, {s(sWV)}, 5120
            s_add_u32 s48, s48, {K1_XT}
            s_mul_i32 s49, {s(sCOL)}, 14
            s_lshl_b32 s50, {s(sRB)}, 6""")
            for j in range(4):
                a(f"""s_add_u32 s51, {s(sWV)}, {4 * j}
                s_min_u32 s51, s51, 13
                s_add_u32 {s(52 + j)}, s51, s49
                s_lshl_b32 s51, {s(52 + j)}, 14
                s_add_u32 m0, s48, {j * 1024}
                s_add_u32 s51, s51, s50
                buffer_load_dwordx4 {v(vT)}, {s(sT2,4)}, s51 offen lds""")
            a(f"""s_lshl_b32 s56, {s(sCOL)}, 2
            s_add_u32 s56, s56, {s(sWV)}
            s_lshl_b32 s51, s56, 14
            s_add_u32 m0, s48, 4096
            s_add_u32 s51, s51, s50
            buffer_load_dwordx4 {v(vT)}, {s(sTO,4)}, s51 offen lds""")
            a(f"""v_lshrrev_b32 v9, 5, v0
            v_bfe_u32 v10, v0, 2, 2
            v_lshl_add_u32 v9, v9, 2, v10
            v_lshlrev_b32 v9, 6, v9
            v_bfe_u32 v10, v0, 4, 1
            v_lshl_add_u32 v9, v10, 5, v9
            v_and_b32 v10, 3, v0
            v_lshl_add_u32 v9, v10, 3, v9
            v_add_u32 {v(vTR)}, s48, v9
            v_lshlrev_b32 v11, 4, v0""")
        stamp(a, 1)
        a(f"s_waitcnt vmcnt({2 * n + E})")
        stamp(a, 2)
        a("s_barrier")
        a(f"s_waitcnt vmcnt({n + E})")
        stamp(a, 3)
        a("s_barrier")
        for st in range(3, 8):
            issue(st)
            if typ == "A" and st == 4:
                for j in range(5):
                    a(f"""ds_read_b64_tr_b16 {v(12 + 4*j, 2)}, {v(vTR)} offset:{j * 1024}
                    ds_read_b64_tr_b16 {v(14 + 4*j, 2)}, {v(vTR)} offset:{j * 1024 + 512}""")
                a(f"""s_mul_i32 s57, {s(sRB)}, 112
                s_lshl_b32 s58, {s(sRB)}, 5
                s_add_u32 s58, s58, s56
                s_lshl_b32 s58, s58, 10
                s_add_u32 s58, s58, {WOF}
                s_waitcnt lgkmcnt(0)""")
                for j in range(4):
                    a(f"""s_add_u32 s51, s57, {s(52 + j)}
                    s_lshl_b32 s51, s51, 10
                    s_add_u32 s51, s51, {W2F}
                    buffer_store_dwordx4 {v(12 + 4*j, 4)}, v11, {s(sWS,4)}, s51 offen""")
                a(f"buffer_store_dwordx4 {v(28, 4)}, v11, {s(sWS,4)}, s58 offen")
            a(f"s_waitcnt vmcnt({n})")
            stamp(a, st + 1)
            a("s_barrier")
        a(f"s_waitcnt vmcnt(0)")
        stamp(a, 9)
        a("s_barrier")
        stamp_end(a, 0, sWV, 4)
        a("s_endpgm")

    a.label(f"{name}_cons")
    ACC = 16; BUF = 128; AX = 192; AW = 196; CS = 200; SUM = 207; SQ = 209; ONE = 211
    a(f"""v_and_b32 v1, 31, v0
    v_lshrrev_b32 v2, 5, v0
    v_bfe_u32 v3, v0, 1, 3
    v_xor_b32 v3, v3, v2
    v_lshlrev_b32 v3, 4, v3
    v_lshl_add_u32 v3, v1, 7, v3
    s_lshl_b32 s43, {s(sWV)}, 12
    v_add_u32 v3, s43, v3
    v_bfe_u32 v4, v0, 2, 2
    v_lshl_add_u32 v4, v2, 3, v4
    v_lshlrev_b32 v4, 6, v4
    v_bfe_u32 v5, v0, 4, 1
    v_lshl_add_u32 v4, v5, 5, v4
    v_and_b32 v5, 3, v0
    v_lshl_add_u32 v4, v5, 3, v4
    v_mov_b32 {v(ONE)}, 0x3f803f80""")
    for p in range(4):
        a(f"""s_add_u32 s44, {s(sWV)}, {p}
        s_and_b32 {s(52 + p)}, s44, 3
        s_lshl_b32 s44, {s(52 + p)}, 5
        v_xor_b32 {v(AX + p)}, s44, v3""")
    for i in range(112): a(f"v_mov_b32 {v(ACC + i)}, 0")
    for i in range(CS, ONE): a(f"v_mov_b32 {v(i)}, 0")
    a(f"""s_lshl_b32 s45, {s(sRB)}, 2
    s_add_u32 s45, s45, {s(sWV)}
    v_lshlrev_b32 v6, 4, v0
    s_bitcmp1_b32 s2, 3
    s_waitcnt lgkmcnt(0)""")
    srd(a, sWS, 16, WS_BYTES)
    a(f"s_cbranch_scc0 {name}_consA")
    for typ in ("B", "A"):
        NT = 7 if typ == "B" else 6
        slot = 16384 + NT * 4096
        if typ == "A": a.label(f"{name}_consA")
        for p in range(4):
            a(f"""s_mul_i32 s44, {s(52 + p)}, {NT * 1024}
            s_add_u32 s44, s44, 16384
            v_add_u32 {v(AW + p)}, s44, v4""")
        xr = lambda b: BUF + 32 * b
        wr = lambda b, nt: BUF + 32 * b + 4 + 4 * nt
        def reads(p):
            b = p & 1
            r = [f"ds_read_b128 {v(xr(b),4)}, {v(AX + p)}"]
            for nt in range(NT):
                r.append(f"ds_read_b64_tr_b16 {v(wr(b,nt),2)}, {v(AW + p)} offset:{nt * 1024}")
                r.append(f"ds_read_b64_tr_b16 {v(wr(b,nt)+2,2)}, {v(AW + p)} offset:{nt * 1024 + 256}")
            return r
        def mfma(b, nt):
            d = v(ACC + 16 * nt, 16)
            if typ == "A" and nt >= 4: return f"v_mfma_f32_32x32x16_bf16 {d}, {v(xr(b),4)}, {v(wr(b,nt),4)}, {d}"
            return f"v_mfma_f32_32x32x16_bf16 {d}, {v(wr(b,nt),4)}, {v(xr(b),4)}, {d}"
        def stat(b):
            r = []
            for i in range(4):
                r.append(f"v_dot2c_f32_bf16 {v(SUM + (i & 1))}, {v(xr(b)+i)}, {v(ONE)}")
                if typ == "A": r.append(f"v_dot2c_f32_bf16 {v(SQ + (i & 1))}, {v(xr(b)+i)}, {v(xr(b)+i)}")
            return r
        def csd(nt):
            return [f"v_dot2c_f32_bf16 {v(CS + nt)}, {v(wr(0,nt)+i)}, {v(ONE)}" for i in range(4)]
        nr = 1 + 2 * NT
        a(f"s_mov_b32 s46, 0\ns_mov_b32 s47, 0\ns_mov_b32 s49, {slot}\ns_mov_b32 s50, {-2 * slot}")
        stamp(a, 1)
        a("s_barrier")
        stamp(a, 2)
        for r in reads(0): a(r)
        a.label(f"{name}_loop{typ}")
        for p in range(4):
            b = p & 1
            rd = reads((p + 1) & 3)
            if p < 3:
                per = [3, 3, 3, 2, 2, 2, 0] if NT == 7 else [3, 3, 3, 2, 2, 0]
            else:
                per = [0, 0, 3, 3, 3, 3, 3] if NT == 7 else [0, 0, 4, 3, 3, 3]
            val = stat(b)
            if p == 0: val = [x for nt in range(4) for x in csd(nt)] + val
            late = []
            if p == 1: late = [x for nt in range(4, NT) for x in csd(nt)]
            val = late + val
            nv = len(val)
            issued = 0
            first_wait = nr - 7
            for nt in range(NT):
                if nt == 0: a(f"s_waitcnt lgkmcnt({first_wait})")
                if nt == 3 and p < 3: a(f"s_waitcnt lgkmcnt({issued})")
                if nt == 2 and p == 3:
                    a(f"""s_waitcnt lgkmcnt(0)
                    s_cmp_eq_u32 s46, 7
                    s_cbranch_scc1 {name}_tail{typ}
                    s_barrier
                    s_add_u32 s47, s47, 1
                    s_cmp_eq_u32 s47, 3
                    s_cselect_b32 s44, s50, s49
                    s_cselect_b32 s47, 0, s47
                    v_add_u32 {v(AX)}, s44, {v(AX)}
                    v_add_u32 {v(AW)}, s44, {v(AW)}""")
                    val = val[:] + [f"v_add_u32 {v(x + q)}, s44, {v(x + q)}" for q in range(1, 4) for x in (AX, AW)]
                if not nomm: a(mfma(b, nt))
                if p == 3:
                    k = 2 if nt < 2 else -(-len(val) // (NT - nt))
                elif p == 1:
                    k = 4 if nt < NT - 4 else -(-len(val) // (NT - nt))
                elif p == 0 and nt < 3:
                    k = 4
                else:
                    k = -(-len(val) // (NT - nt))
                take, val = val[:k], val[k:]
                rr, rd = rd[:per[nt]], rd[per[nt]:]
                issued += len(rr)
                for x in take:
                    if not (nodot and "dot2" in x): a(x)
                for x in rr:
                    if not nord: a(x)
            assert not val and not rd, (typ, p, val, rd)
        a(f"s_add_u32 s46, s46, 1\ns_branch {name}_loop{typ}")
        a.label(f"{name}_tail{typ}")
        stamp(a, 3)
        tv = stat(1)[4:] if typ == "A" else []
        for nt in range(2, NT):
            a(mfma(1, nt))
            if tv: a(tv.pop(0))
        a(f"""s_lshr_b32 s44, {s(sWV)}, 1
        s_lshl_b32 s44, s44, 9
        s_and_b32 s48, {s(sWV)}, 1
        s_lshl_b32 s48, s48, 3
        s_add_u32 s44, s44, s48
        s_add_u32 s44, s44, {K1_CS}
        v_lshlrev_b32 v7, 4, v1
        v_lshl_add_u32 v7, v2, 2, v7
        v_add_u32 v7, s44, v7""")
        for nt in range(NT):
            a(f"v_cvt_pk_bf16_f32 {v(BUF + nt)}, {v(CS + nt)}, {v(CS + nt)}")
        for nt in range(NT):
            a(f"v_and_b32 {v(BUF + nt)}, 0xffff0000, {v(BUF + nt)}")
        for nt in range(NT):
            a(f"v_sub_f32 {v(BUF + nt)}, {v(CS + nt)}, {v(BUF + nt)}")
        for nt in range(NT):
            a(f"v_cvt_pk_bf16_f32 {v(BUF + nt)}, {v(CS + nt)}, {v(BUF + nt)}")
        for nt in range(NT):
            a(f"ds_write_b32 v7, {v(BUF + nt)} offset:{nt * 1024}")
        a(f"""v_add_f32 v8, {v(SUM)}, {v(SUM+1)}
        v_add_f32 v10, {v(SQ)}, {v(SQ+1)}
        v_mov_b32 v9, v8
        v_mov_b32 v11, v10
        s_waitcnt lgkmcnt(0)
        s_barrier
        v_permlane32_swap_b32 v8, v9
        v_permlane32_swap_b32 v10, v11
        v_add_u32 v7, {K1_CS}, v6""")
        for nt in range(NT):
            a(f"ds_read_b128 {v(BUF + 8 + 4 * nt, 4)}, v7 offset:{nt * 1024}")
        M4 = 12
        a(f"""v_add_f32 v8, v8, v9
        v_add_f32 v10, v10, v11
        v_mul_f32 v8, {fbits(-1.0/512)}, v8
        v_cvt_pk_bf16_f32 {v(M4)}, v8, v8
        v_cvt_pk_bf16_f32 {v(M4+1)}, v8, v8
        v_cvt_pk_bf16_f32 {v(M4+2)}, v8, v8
        v_cvt_pk_bf16_f32 {v(M4+3)}, v8, v8""")
        RR = 212; RQ = 214; R16 = 216
        if typ == "A":
            a(f"""v_mul_f32 v9, v8, v8
            v_mov_b32 v11, {fbits(1.0/512)}
            v_fma_f32 v10, v10, v11, -v9
            v_max_f32 v10, 0, v10
            v_cvt_pk_bf16_f32 v10, v10, v10
            v_and_b32 v10, 0xffff0000, v10
            v_add_f32 v10, {fbits(1e-5)}, v10
            v_cvt_pk_bf16_f32 v10, v10, v10
            v_and_b32 v10, 0xffff0000, v10
            v_sqrt_f32 v10, v10
            s_lshl_b32 s44, {s(sWV)}, 7
            v_cvt_pk_bf16_f32 v10, v10, v10
            v_and_b32 v10, 0xffff0000, v10
            v_rcp_f32 {v(RR)}, v10
            s_add_u32 s44, s44, {K1_RX}
            v_lshl_add_u32 v9, v1, 2, s44
            v_lshl_add_u32 v11, v2, 4, s44
            v_mul_f32 {v(RQ)}, {fbits(0.25 * LOG2E)}, {v(RR)}
            ds_write_b32 v9, {v(RR)}""")
            for i in range(4):
                a(f"ds_read_b128 {v(R16 + 4 * i, 4)}, v11 offset:{32 * i}")
            a("s_waitcnt lgkmcnt(5)")
        else:
            a("s_nop 0\ns_waitcnt lgkmcnt(0)")
        for nt in range(NT):
            d = v(ACC + 16 * nt, 16); cf = v(BUF + 8 + 4 * nt, 4)
            if typ == "A" and nt >= 4: a(f"v_mfma_f32_32x32x16_bf16 {d}, {v(M4,4)}, {cf}, {d}")
            else: a(f"v_mfma_f32_32x32x16_bf16 {d}, {cf}, {v(M4,4)}, {d}")
        PK = BUF + 40
        stamp(a, 4)
        if typ == "B":
            a(f"""s_mul_i32 s44, s45, 112
            s_mul_i32 s48, {s(sCOL)}, 14
            s_add_u32 s44, s44, s48
            s_lshl_b32 s44, s44, 10
            s_add_u32 s44, s44, {HF}
            s_nop 0""")
            for nt in range(NT):
                pk = PK + 8 * (nt & 1)
                for i in range(8):
                    a(f"v_cvt_pk_bf16_f32 {v(pk + i)}, {v(ACC + 16*nt + 2*i)}, {v(ACC + 16*nt + 2*i + 1)}")
                for i in range(8):
                    a(f"v_pk_max_i16 {v(pk + i)}, {v(pk + i)}, 0")
                if nt and nt % 2 == 0: a("s_add_u32 s44, s44, 4096")
                for sx in range(2):
                    a(f"buffer_store_dwordx4 {v(pk + 4*sx, 4)}, v6, {s(sWS,4)}, s44 offen offset:{(nt & 1) * 2048 + sx * 1024}")
                if nt == NT - 2: a("s_nop 3")
        else:
            a(f"""s_lshl_b32 s44, {s(sCOL)}, 8
            s_add_u32 s44, s44, s45
            s_lshl_b32 s44, s44, 10
            v_bfe_u32 v8, v0, 4, 1
            v_lshlrev_b32 v8, 16, v8
            v_lshl_add_u32 v8, v2, 9, v8
            v_and_b32 v9, 15, v0
            v_lshl_add_u32 v8, v9, 4, v8
            s_cmp_lg_u32 {s(sCOL)}, 0
            s_cbranch_scc1 {name}_nors
            s_lshl_b32 s48, s45, 7
            s_add_u32 s48, s48, {RS}
            v_lshlrev_b32 v9, 2, v1
            buffer_store_dword {v(RR)}, v9, {s(sWS,4)}, s48 offen""")
            a.label(f"{name}_nors")
            a("s_waitcnt lgkmcnt(0)")
            for nt in range(NT):
                pk = PK + 8 * (nt & 1)
                for i in range(8):
                    r = v(ACC + 16*nt + 2*i, 2)
                    if nt < 2: a(f"v_pk_mul_f32 {r}, {r}, {v(RQ,2)} op_sel_hi:[1,0]")
                    elif nt < 4: a(f"v_pk_mul_f32 {r}, {r}, {v(RR,2)} op_sel_hi:[1,0]")
                    else: a(f"v_pk_mul_f32 {r}, {r}, {v(R16 + 2*i, 2)}")
                for i in range(8):
                    a(f"v_cvt_pk_bf16_f32 {v(pk + i)}, {v(ACC + 16*nt + 2*i)}, {v(ACC + 16*nt + 2*i + 1)}")
                base = (QF, KF, VF)[nt >> 1] + (nt & 1) * 131072
                if nt < 4:
                    for sx in range(2):
                        a(f"""s_add_u32 s48, s44, {base + sx * 65536}
                        buffer_store_dwordx4 {v(pk + 4*sx, 4)}, v6, {s(sWS,4)}, s48 offen""")
                else:
                    a(f"s_add_u32 s48, s44, {base}")
                    for sx in range(2):
                        a(f"buffer_store_dwordx4 {v(pk + 4*sx, 4)}, v8, {s(sWS,4)}, s48 offen offset:{256 * sx}")
        stamp(a, 5)
        if asmlib.TRACE: a("s_waitcnt vmcnt(0)")
        stamp_end(a, 0, sWV)
        a("s_endpgm")
    a.label(f"{name}_end")
    a("s_endpgm")
    return a.text(), 232

if __name__ == "__main__":
    t, nv = gen_k1()
    for e in lint(t, "k1"): print(e)
    print(len(t.split("\n")), "lines")
```

```python
from asmlib import *
from k1 import *

K2_ONES = 131072
K2_X = K2_ONES + 4096
K2_CNT = K2_X + 20480
K2_LDS = K2_CNT + 64

def lds_signal(a, vcnt, vone):
    a(f"""s_mov_b64 exec, 1
    ds_add_u32 {v(vcnt)}, {v(vone)}
    s_mov_b64 exec, -1""")

def lds_wait(a, lab, vcnt, vt, st, target):
    a.label(lab)
    a(f"""ds_read_b32 {v(vt)}, {v(vcnt)}
    s_waitcnt lgkmcnt(0)
    v_readfirstlane_b32 {s(st)}, {v(vt)}
    s_nop 0
    s_cmp_ge_u32 {s(st)}, {target}
    s_cbranch_scc1 {lab}_ok
    s_sleep 1
    s_branch {lab}""")
    a.label(lab + "_ok")

def gen_k2(name="k2_kernel", ffn_prio=2, force_fallback=False):
    a = Asm()
    sWS = 20; sH = 24; sQB = 25; sWV = 26
    a(f"""s_cmp_ge_u32 s2, 256
    s_cbranch_scc1 {name}_end""")
    stamp(a, 0)
    a(f"""s_load_dwordx2 s[16:17], s[0:1], 64
    v_lshrrev_b32 v1, 6, v0
    v_and_b32 v0, 63, v0
    s_and_b32 s3, s2, 7
    v_readfirstlane_b32 {s(sWV)}, v1
    s_lshl_b32 s3, s3, 2
    s_bfe_u32 {s(sH)}, s2, 0x20003
    s_add_u32 {s(sH)}, {s(sH)}, s3
    s_lshr_b32 {s(sQB)}, s2, 5
    v_lshlrev_b32 v1, 4, v0
    s_cmp_lt_u32 {s(sWV)}, 8
    s_cbranch_scc1 {name}_attn""")
    a(f"""s_setprio {ffn_prio}
    s_sub_u32 {s(sWV)}, {s(sWV)}, 8
    s_lshr_b32 s27, {s(sWV)}, 1
    s_and_b32 s28, {s(sWV)}, 1
    s_lshl_b32 s29, s27, 21
    s_lshl_b32 s30, {s(sH)}, 16
    s_add_u32 s29, s29, s30
    s_lshl_b32 s30, s28, 15
    s_add_u32 s29, s29, s30
    s_add_u32 s29, s29, {KF}
    s_lshl_b32 s30, {s(sWV)}, 15
    s_waitcnt lgkmcnt(0)""")
    srd(a, sWS, 16, WS_BYTES)
    for g in range(8):
        a(f"s_add_u32 m0, s30, {g * 4096}\ns_add_u32 s31, s29, {g * 4096}")
        for i in range(4):
            a(f"buffer_load_dwordx4 v1, {s(sWS,4)}, s31 offen offset:{i * 1024} lds")
    sW0, sW1, sH0, sH1 = 32, 33, 34, 35
    a(f"""s_mul_i32 s31, {s(sWV)}, 28
    s_lshl_b32 s36, {s(sQB)}, 1
    s_add_u32 s36, s36, s27
    s_xor_b32 s37, s36, 1
    s_lshl_b32 s38, {s(sH)}, 1
    s_add_u32 s38, s38, s28
    s_xor_b32 s39, s38, 1""")
    for i, base in enumerate((W2F, W2F, HF, HF)):
        a(f"""s_mul_i32 {s(32 + i)}, {s(36 + i)}, 112
        s_add_u32 {s(32 + i)}, {s(32 + i)}, s31
        s_lshl_b32 {s(32 + i)}, {s(32 + i)}, 10
        s_add_u32 {s(32 + i)}, {s(32 + i)}, {base}""")
    ACC = 8; RING = 72
    def floads(u):
        return [f"buffer_load_dwordx4 {v(RING + 16*u + 4*i, 4)}, v1, {s(sWS,4)}, {s(32 + i)} offen offset:{u * 1024}" for i in range(4)]
    def fm(u, j):
        d = v(ACC + 16*j, 16)
        return f"v_mfma_f32_32x32x16_bf16 {d}, {v(RING + 16*u + 4*(j >> 1), 4)}, {v(RING + 16*u + 8 + 4*(j & 1), 4)}, {d}"
    for u in range(4):
        for x in floads(u): a(x)
    stamp(a, 1)
    a(f"s_waitcnt vmcnt({26 + 16})")
    stamp(a, 2)
    a("s_barrier")
    for i in range(64): a(f"v_mov_b32 {v(ACC + i)}, 0")
    a(f"""v_mov_b32 v2, {K2_CNT}
    v_mov_b32 v3, 1
    s_mov_b32 s40, 6
    s_waitcnt vmcnt(16)""")
    stamp(a, 3)
    a("s_barrier")
    stamp(a, 4)
    a.label(f"{name}_floop")
    for i in range(4): a(f"s_add_u32 {s(32 + i)}, {s(32 + i)}, 4096")
    for u in range(4):
        a("s_waitcnt vmcnt(12)")
        for j in range(4): a(fm(u, j))
        for x in floads(u): a(x)
    a(f"""s_sub_u32 s40, s40, 1
    s_cmp_lg_u32 s40, 0
    s_cbranch_scc1 {name}_floop""")
    for u in range(4):
        a(f"s_waitcnt vmcnt({12 - 4*u})")
        for j in range(4): a(fm(u, j))
    stamp(a, 5)
    for ph in (1, 2, 3, 0):
        a(f"""s_xor_b32 s41, {s(sWV)}, {ph}
        s_lshl_b32 s41, s41, 12
        s_add_u32 s41, s41, {K2_X}
        v_add_u32 v4, s41, v1""")
        if ph != 1:
            lds_wait(a, f"{name}_fw{ph}", 2, 5, 42, 4 * ((ph - 1) & 3))
            for i in range(4): a(f"ds_read_b128 {v(RING + 4*i, 4)}, v4 offset:{1024 * i}")
            for i in range(4):
                a(f"s_waitcnt lgkmcnt({3 - i})")
                for k in range(2):
                    r = v(ACC + 16*ph + 4*i + 2*k, 2)
                    a(f"v_pk_add_f32 {r}, {r}, {v(RING + 4*i + 2*k, 2)}")
        else:
            a("s_nop 7")
        if ph != 0:
            for i in range(4): a(f"ds_write_b128 v4, {v(ACC + 16*ph + 4*i, 4)} offset:{1024 * i}")
        lds_signal(a, 2, 3)
    for i in range(8):
        a(f"v_cvt_pk_bf16_f32 {v(RING + i)}, {v(ACC + 2*i)}, {v(ACC + 2*i + 1)}")
    a(f"""s_lshl_b32 s41, {s(sH)}, 3
    s_add_u32 s41, s41, {s(sQB)}
    s_lshl_b32 s41, s41, 2
    s_add_u32 s41, s41, {s(sWV)}
    s_lshl_b32 s41, s41, 11
    s_add_u32 s41, s41, {FF}
    buffer_store_dwordx4 {v(RING, 4)}, v1, {s(sWS,4)}, s41 offen
    buffer_store_dwordx4 {v(RING + 4, 4)}, v1, {s(sWS,4)}, s41 offen offset:1024""")
    stamp_end(a, 1, sWV, 8)
    a("s_endpgm")

    a.label(f"{name}_attn")
    OA, OB, SA, SB, PA, PB, QA, QB_, KK, VV = 8, 24, 40, 56, 72, 80, 88, 92, 96, 104
    vK, vV, vST = 2, 3, 4
    a(f"""s_and_b32 s27, {s(sWV)}, 3
    s_lshr_b32 s28, {s(sWV)}, 2
    s_lshl_b32 s29, {s(sQB)}, 3
    s_lshl_b32 s30, s27, 1
    s_add_u32 s29, s29, s30
    s_add_u32 s29, s29, s28
    s_lshl_b32 s30, {s(sH)}, 6
    s_add_u32 s31, s30, s29
    s_xor_b32 s32, s31, 1
    s_lshl_b32 s31, s31, 10
    s_lshl_b32 s32, s32, 10
    s_waitcnt lgkmcnt(0)""")
    srd(a, sWS, 16, WS_BYTES)
    a(f"""buffer_load_dwordx4 {v(QA,4)}, v1, {s(sWS,4)}, s31 offen
    buffer_load_dwordx4 {v(QB_,4)}, v1, {s(sWS,4)}, s32 offen
    v_mov_b32 {v(SA)}, 0x3f803f80
    v_mov_b32 {v(SA+1)}, 0x3f803f80
    v_mov_b32 {v(SA+2)}, 0x3f803f80
    v_mov_b32 {v(SA+3)}, 0x3f803f80
    s_lshl_b32 s33, s27, 10
    s_add_u32 s33, s33, {K2_ONES}
    v_add_u32 v5, s33, v1
    v_mov_b32 v6, {K2_CNT}
    v_mov_b32 v7, 0
    ds_write_b128 v5, {v(SA,4)}
    ds_write_b32 v6, v7
    s_lshl_b32 s33, s28, 15
    v_add_u32 {v(vK)}, s33, v1
    v_and_b32 v5, 15, v0
    v_lshlrev_b32 v5, 4, v5
    v_lshrrev_b32 v7, 5, v0
    v_lshl_add_u32 v7, v7, 9, v5
    s_add_u32 s34, s33, 65536
    v_add_u32 v7, s34, v7
    v_add_u32 v5, {K2_ONES}, v5
    v_and_b32 {v(vST)}, 16, v0
    v_cmp_eq_u32 vcc, 0, {v(vST)}
    v_mov_b32 {v(vST)}, 0
    v_mov_b32 {v(PA)}, 0x1000
    v_cndmask_b32 {v(vV)}, v5, v7, vcc
    v_cndmask_b32 {v(vST)}, {v(vST)}, {v(PA)}, vcc""")
    for i in range(32): a(f"v_mov_b32 {v(OA + i)}, 0")
    for i in range(8): a(f"v_mov_b32 {v(PB + i)}, 0")
    for i in range(8): a(f"v_mov_b32 {v(VV + 8 + i)}, 0")
    a(f"""s_mov_b32 s40, 0
    s_waitcnt lgkmcnt(0)""")
    stamp(a, 1)
    a("s_barrier")
    stamp(a, 2)
    a(f"""ds_read_b128 {v(KK,4)}, {v(vK)}
    ds_read_b128 {v(VV,4)}, {v(vV)}
    ds_read_b128 {v(VV+4,4)}, {v(vV)} offset:256
    ds_read_b128 {v(KK+4,4)}, {v(vK)} offset:1024
    v_lshrrev_b32 v5, 2, {v(vST)}
    v_add_u32 {v(vV)}, {v(vV)}, v5
    s_waitcnt vmcnt(0) lgkmcnt(3)
    v_mfma_f32_32x32x16_bf16 {v(SA,16)}, {v(KK,4)}, {v(QA,4)}, 0
    s_nop 7
    s_nop 1""")
    def phase(S, P, mf, extra, filler):
        e = [f"v_exp_f32 {v(S+i)}, {v(S+i)}" for i in range(16)]
        c = [f"v_cvt_pk_bf16_f32 {v(P+i)}, {v(S+2*i)}, {v(S+2*i+1)}" for i in range(8)]
        seq = [mf[0], e[0], e[1]]
        for i in range(7):
            seq += [e[2*i+2], c[i], e[2*i+3]]
            if i == 0: seq += extra[:1]
            if i == 1: seq += [mf[1]]
            if i == 2: seq += extra[1:]
            if i == 4: seq += [mf[2]]
        seq += [filler, c[7]]
        for x in seq: a(x)
    a.label(f"{name}_aloop")
    a(f"""s_cmp_lg_u32 s40, 1
    s_cbranch_scc1 {name}_nobar""")
    stamp(a, 3)
    a("s_barrier")
    stamp(a, 4)
    a.label(f"{name}_nobar")
    mm = "v_mfma_f32_32x32x16_bf16"
    for u in range(4):
        b = u & 1
        K0, K1_, V0, V1 = KK + 4*b, KK + 4*(1-b), VV + 8*b, VV + 8*(1-b)
        phase(SA, PA,
              [f"{mm} {v(SB,16)}, {v(K0,4)}, {v(QB_,4)}, 0",
               f"{mm} {v(OB,16)}, {v(V1,4)}, {v(PB,4)}, {v(OB,16)}",
               f"{mm} {v(OB,16)}, {v(V1+4,4)}, {v(PB+4,4)}, {v(OB,16)}"],
              [], "s_waitcnt lgkmcnt(0)")
        phase(SB, PB,
              [f"{mm} {v(SA,16)}, {v(K1_,4)}, {v(QA,4)}, 0",
               f"{mm} {v(OA,16)}, {v(V0,4)}, {v(PA,4)}, {v(OA,16)}",
               f"{mm} {v(OA,16)}, {v(V0+4,4)}, {v(PA+4,4)}, {v(OA,16)}"],
              [f"ds_read_b128 {v(V1,4)}, {v(vV)} offset:{u * 1024}",
               f"ds_read_b128 {v(V1+4,4)}, {v(vV)} offset:{u * 1024 + 256}"],
              f"ds_read_b128 {v(K0,4)}, {v(vK)} offset:{(u + 2) * 1024}")
    a(f"""v_add_u32 {v(vK)}, 0x1000, {v(vK)}
    v_add_u32 {v(vV)}, {v(vST)}, {v(vV)}
    s_add_u32 s40, s40, 1
    s_cmp_lt_u32 s40, 8
    s_cbranch_scc1 {name}_aloop
    {mm} {v(OB,16)}, {v(VV+8,4)}, {v(PB,4)}, {v(OB,16)}
    {mm} {v(OB,16)}, {v(VV+12,4)}, {v(PB+4,4)}, {v(OB,16)}
    s_mul_i32 s33, {s(sWV)}, 2304
    s_add_u32 s33, s33, {K2_X}
    s_xor_b32 s34, {s(sWV)}, 4
    s_mul_i32 s34, s34, 2304
    s_add_u32 s34, s34, {K2_X}
    v_add_u32 v5, s33, v1
    v_lshl_add_u32 v7, v0, 2, s33""")
    stamp(a, 5)
    lds_wait(a, f"{name}_aw", 6, PA, 42, 16)
    stamp(a, 6)
    a(f"""ds_write_b128 v5, {v(OB,4)}
    ds_write_b128 v5, {v(OB+4,4)} offset:1024
    ds_write_b32 v7, {v(OB+8)} offset:2048
    v_add_u32 v5, s34, v1
    v_lshl_add_u32 v7, v0, 2, s34
    s_waitcnt lgkmcnt(0)
    s_barrier
    ds_read_b128 {v(SB,4)}, v5
    ds_read_b128 {v(SB+4,4)}, v5 offset:1024
    ds_read_b32 {v(SB+8)}, v7 offset:2048
    s_lshl_b32 s33, s29, 5
    s_add_u32 s33, s33, {s(sH)}
    s_lshl_b32 s33, s33, 10
    s_add_u32 s33, s33, {OF}
    s_mov_b32 s34, {fbits(2.0**-60)}
    s_mov_b32 s35, {fbits(2.0**60)}
    s_mov_b32 s36, 0x7f800000
    s_waitcnt lgkmcnt(0)""")
    for i in range(9): a(f"v_add_f32 {v(OA+i)}, {v(OA+i)}, {v(SB+i)}")
    a(f"v_add_f32 v5, abs({v(OA)}), abs({v(OA+1)})")
    for i in range(2, 8): a(f"v_add_f32 v5, v5, abs({v(OA+i)})")
    a(f"""v_cmp_nlt_f32 s[44:45], s34, {v(OA+8)}
    v_cmp_ngt_f32 s[46:47], s35, {v(OA+8)}
    v_cmp_ngt_f32 vcc, s36, v5
    s_nop 0
    s_or_b64 s[44:45], s[44:45], s[46:47]
    s_or_b64 s[44:45], s[44:45], vcc""")
    if force_fallback: a(f"s_branch {name}_slow")
    else: a(f"s_cbranch_scc1 {name}_slow")
    a.label(f"{name}_fin")
    a(f"v_rcp_f32 v6, {v(OA+8)}\ns_nop 0")
    for i in range(4):
        r = v(OA + 2*i, 2)
        a(f"v_pk_mul_f32 {r}, {r}, v[6:7] op_sel_hi:[1,0]")
    for i in range(4): a(f"v_cvt_pk_bf16_f32 {v(PA+i)}, {v(OA+2*i)}, {v(OA+2*i+1)}")
    a(f"""buffer_store_dwordx4 {v(PA,4)}, v1, {s(sWS,4)}, s33 offen""")
    stamp(a, 7)
    if asmlib.TRACE: a("s_waitcnt vmcnt(0)")
    stamp_end(a, 1, sWV)
    a("s_endpgm")
    a.label(f"{name}_slow")
    vM, vN, vT = 5, 6, 7
    a(f"""v_mov_b32 {v(vK)}, v1
    v_lshlrev_b32 v5, 3, {v(vST)}
    s_add_u32 s34, s28, 1
    v_mul_lo_u32 v5, v5, s34
    v_lshrrev_b32 v6, 2, {v(vST)}
    v_add_u32 v5, v5, v6
    v_sub_u32 {v(vV)}, {v(vV)}, v5
    v_lshrrev_b32 {v(vST)}, 2, {v(vST)}
    v_mov_b32 {v(vM)}, 0xff800000
    s_mov_b32 s40, 0""")
    for i in range(16): a(f"v_mov_b32 {v(OA + i)}, 0")
    a.label(f"{name}_sloop")
    a(f"""ds_read_b128 {v(KK,4)}, {v(vK)}
    ds_read_b128 {v(VV,4)}, {v(vV)}
    ds_read_b128 {v(VV+4,4)}, {v(vV)} offset:256
    v_add_u32 {v(vK)}, 0x400, {v(vK)}
    v_add_u32 {v(vV)}, {v(vST)}, {v(vV)}
    s_waitcnt lgkmcnt(0)
    {mm} {v(SA,16)}, {v(KK,4)}, {v(QA,4)}, 0
    s_nop 11
    v_max3_f32 {v(vN)}, {v(SA)}, {v(SA+1)}, {v(vM)}""")
    for i in range(1, 8): a(f"v_max3_f32 {v(vN)}, {v(SA+2*i)}, {v(SA+2*i+1)}, {v(vN)}")
    a(f"""v_mov_b32 {v(vT)}, {v(vN)}
    s_nop 1
    v_permlane32_swap_b32 {v(vT)}, {v(vN)}
    s_nop 1
    v_max_f32 {v(vN)}, {v(vN)}, {v(vT)}
    v_sub_f32 {v(vT)}, {v(vM)}, {v(vN)}
    v_exp_f32 {v(vT)}, {v(vT)}
    v_mov_b32 {v(vM)}, {v(vN)}""")
    for i in range(16): a(f"v_sub_f32 {v(SA+i)}, {v(SA+i)}, {v(vN)}")
    for i in range(16): a(f"v_mul_f32 {v(OA+i)}, {v(OA+i)}, {v(vT)}")
    for i in range(16): a(f"v_exp_f32 {v(SA+i)}, {v(SA+i)}")
    a("s_nop 0")
    for i in range(8): a(f"v_cvt_pk_bf16_f32 {v(PA+i)}, {v(SA+2*i)}, {v(SA+2*i+1)}")
    a(f"""s_add_u32 s40, s40, 1
    s_cmp_lt_u32 s40, 64
    {mm} {v(OA,16)}, {v(VV,4)}, {v(PA,4)}, {v(OA,16)}
    {mm} {v(OA,16)}, {v(VV+4,4)}, {v(PA+4,4)}, {v(OA,16)}
    s_nop 11
    s_cbranch_scc1 {name}_sloop
    s_branch {name}_fin""")
    a.label(f"{name}_end")
    a("s_endpgm")
    return a.text(), 136

K3_T = 131072
K3_LDS = K3_T + 4 * 2560

def gen_k3(name="k3_kernel"):
    a = Asm()
    sWS, sX, sO = 20, 24, 28
    sTM, sTN, sWV = 32, 33, 34
    a(f"""s_cmp_ge_u32 s2, 256
    s_cbranch_scc1 {name}_end""")
    stamp(a, 0)
    a(f"""s_load_dwordx2 s[16:17], s[0:1], 64
    s_load_dwordx2 s[4:5], s[0:1], 0
    s_load_dwordx2 s[6:7], s[0:1], 48
    v_lshrrev_b32 v1, 6, v0
    v_and_b32 v0, 63, v0
    s_and_b32 s3, s2, 7
    v_readfirstlane_b32 {s(sWV)}, v1
    s_lshl_b32 s3, s3, 2
    s_bfe_u32 {s(sTM)}, s2, 0x20003
    s_add_u32 {s(sTM)}, {s(sTM)}, s3
    s_lshr_b32 {s(sTN)}, s2, 5
    v_lshlrev_b32 v1, 4, v0
    s_lshr_b32 s35, {s(sWV)}, 1
    s_and_b32 s36, {s(sWV)}, 1
    s_cmp_eq_u32 s35, 0
    s_cselect_b32 s37, {s(sTM)}, {s(sTN)}
    s_mov_b32 s38, {WOF}
    s_cselect_b32 s38, {OF}, s38
    s_lshl_b32 s37, s37, 1
    s_add_u32 s37, s37, s36
    s_lshl_b32 s37, s37, 15
    s_add_u32 s37, s37, s38
    s_lshl_b32 s38, {s(sWV)}, 15
    s_lshl_b32 s39, {s(sTM)}, 3
    s_add_u32 s39, s39, {s(sTN)}
    s_lshl_b32 s39, s39, 2
    s_add_u32 s39, s39, {s(sWV)}
    s_lshl_b32 s39, s39, 11
    s_add_u32 s39, s39, {FF}
    s_lshl_b32 s40, {s(sTM)}, 1
    s_add_u32 s40, s40, s36
    s_lshl_b32 s41, s40, 7
    s_add_u32 s41, s41, {RS}
    s_lshl_b32 s40, s40, 15
    s_lshl_b32 s42, {s(sTN)}, 1
    s_add_u32 s42, s42, s35
    s_lshl_b32 s42, s42, 6
    s_add_u32 s40, s40, s42
    s_add_u32 s43, s40, 16384
    v_and_b32 v2, 31, v0
    v_lshlrev_b32 v3, 2, v2
    v_lshrrev_b32 v4, 2, v0
    v_and_b32 v5, 3, v0
    v_lshlrev_b32 v5, 4, v5
    v_lshl_add_u32 v6, v4, 10, v5
    s_waitcnt lgkmcnt(0)""")
    srd(a, sWS, 16, WS_BYTES)
    FB, RR, XB, G, ACC, FR = 8, 16, 20, 28, 44, 60
    def dma(g):
        a(f"s_add_u32 m0, s38, {g * 4096}\ns_add_u32 s44, s37, {g * 4096}")
        for i in range(4):
            a(f"buffer_load_dwordx4 v1, {s(sWS,4)}, s44 offen offset:{i * 1024} lds")
    dma(0); dma(1)
    a(f"""buffer_load_dwordx4 {v(FB,4)}, v1, {s(sWS,4)}, s39 offen
    buffer_load_dwordx4 {v(FB+4,4)}, v1, {s(sWS,4)}, s39 offen offset:1024
    buffer_load_dword {v(RR)}, v3, {s(sWS,4)}, s41 offen""")
    for g in range(2, 8): dma(g)
    srd(a, sX, 4, 2 * MB); srd(a, sO, 6, 2 * MB)
    a(f"""buffer_load_dwordx4 {v(XB,4)}, v6, {s(sX,4)}, s40 offen
    buffer_load_dwordx4 {v(XB+4,4)}, v6, {s(sX,4)}, s43 offen
    s_lshl_b32 s45, s36, 15
    s_lshl_b32 s46, s35, 15
    s_add_u32 s46, s46, 65536
    v_add_u32 v17, s45, v1
    v_add_u32 v18, s46, v1
    s_mul_i32 s45, {s(sWV)}, 2560
    s_add_u32 s45, s45, {K3_T}
    v_mul_u32_u24 v2, 80, v2
    v_lshrrev_b32 v3, 5, v0
    v_lshl_add_u32 v2, v3, 3, v2
    v_add_u32 v2, s45, v2
    v_mul_u32_u24 v4, 80, v4
    v_add3_u32 v4, v4, v5, s45""")
    mm = "v_mfma_f32_32x32x16_bf16"
    silu = []
    for i in range(8):
        silu += [f"v_lshlrev_b32 {v(G+2*i)}, 16, {v(FB+i)}", f"v_and_b32 {v(G+2*i+1)}, 0xffff0000, {v(FB+i)}"]
    for i in range(8):
        r = v(G+2*i, 2)
        silu += [f"v_pk_mul_f32 {r}, {r}, {v(RR,2)} op_sel_hi:[1,0]"]
    T = 92
    for i in range(16): silu += [f"v_mul_f32 {v(T+i)}, {fbits(-LOG2E)}, {v(G+i)}"]
    for i in range(16): silu += [f"v_exp_f32 {v(T+i)}, {v(T+i)}"]
    for i in range(16): silu += [f"v_add_f32 {v(T+i)}, 1.0, {v(T+i)}"]
    for i in range(16): silu += [f"v_rcp_f32 {v(T+i)}, {v(T+i)}"]
    for i in range(16): silu += [f"v_mul_f32 {v(G+i)}, {v(G+i)}, {v(T+i)}"]
    for c in range(4):
        if c == 0: stamp(a, 1)
        a(f"s_waitcnt vmcnt({(29, 18, 10, 2)[c]})")
        stamp(a, 2 + c)
        a("s_barrier")
        rd = []
        for k in range(8):
            ks = 8*c + k
            rd.append((f"ds_read_b128 {v(FR + 8*(k&3), 4)}, v18 offset:{ks * 1024}", f"ds_read_b128 {v(FR + 8*(k&3) + 4, 4)}, v17 offset:{ks * 1024}"))
        for k in range(4): a(rd[k][0]); a(rd[k][1])
        for k in range(8):
            a(f"s_waitcnt lgkmcnt({6 if k < 5 else 2 * (7 - k)})")
            cin = "0" if (c == 0 and k == 0) else v(ACC,16)
            a(f"{mm} {v(ACC,16)}, {v(FR + 8*(k&3), 4)}, {v(FR + 8*(k&3) + 4, 4)}, {cin}")
            if k < 4: a(rd[k+4][0]); a(rd[k+4][1])
        if c == 0:
            a("s_waitcnt vmcnt(26)")
            for x in silu: a(x)
    a("s_nop 11")
    stamp(a, 6)
    for i in range(8):
        r = v(ACC+2*i, 2)
        a(f"v_pk_mul_f32 {r}, {r}, {v(G+2*i, 2)}")
    for i in range(8): a(f"v_cvt_pk_bf16_f32 {v(FB+i)}, {v(ACC+2*i)}, {v(ACC+2*i+1)}")
    for i in range(4): a(f"ds_write_b64 v2, {v(FB+2*i, 2)} offset:{16*i}")
    a(f"""ds_read_b128 {v(FR,4)}, v4
    ds_read_b128 {v(FR+4,4)}, v4 offset:1280
    s_waitcnt vmcnt(0)""")
    for i in range(8):
        a(f"v_lshlrev_b32 {v(G+2*i)}, 16, {v(XB+i)}\nv_and_b32 {v(G+2*i+1)}, 0xffff0000, {v(XB+i)}")
    a("s_waitcnt lgkmcnt(0)")
    for i in range(8):
        a(f"v_lshlrev_b32 {v(T+2*i)}, 16, {v(FR+i)}\nv_and_b32 {v(T+2*i+1)}, 0xffff0000, {v(FR+i)}")
    for i in range(8):
        a(f"v_pk_add_f32 {v(G+2*i,2)}, {v(G+2*i,2)}, {v(T+2*i,2)}")
    for i in range(8): a(f"v_cvt_pk_bf16_f32 {v(FB+i)}, {v(G+2*i)}, {v(G+2*i+1)}")
    a(f"""buffer_store_dwordx4 {v(FB,4)}, v6, {s(sO,4)}, s40 offen
    buffer_store_dwordx4 {v(FB+4,4)}, v6, {s(sO,4)}, s43 offen""")
    stamp(a, 7)
    if asmlib.TRACE: a("s_waitcnt vmcnt(0)")
    stamp_end(a, 2, sWV)
    a.label(f"{name}_end")
    a("s_endpgm")
    return a.text(), 108

if __name__ == "__main__":
    for g, n in ((gen_k2, "k2"), (gen_k3, "k3")):
        t, nv = g()
        for e in lint(t, n): print(e)
        print(len(t.split("\n")), "lines")
```

```python
from build import *
t1, n1 = k1.gen_k1(); t2, n2 = k2.gen_k2(); t3, n3 = k2.gen_k3()
K1 = ("k1_kernel", t1, n1, 256, 512, k1.K1_LDS); K2 = ("k2_kernel", t2, n2, 256, 768, k2.K2_LDS); K3 = ("k3_kernel", t3, n3, 256, 256, k2.K3_LDS)
E = ("e_kernel", "    s_endpgm\n", 8, 256, 64, 0)
assemble([K1, K2, K3], "x_base.s")
assemble([K1, K2, K3, E], "x_eend.s")
assemble([E, K1, K2, K3], "x_estart.s")
assemble([K1, K2, K3, E, E, E, E], "x_e4.s")
assemble([K1, K1, K2, K3], "x_k1k1.s")
assemble([K1, K2, K2, K3], "x_k2k2.s")
```

```python
from asmlib import *
def gen_probe(name, ka, ia, wa, kb, ib, wb, factor, cyc=False, reda="min", redb="max"):
    a = Asm()
    a(f"""s_cmp_ge_u32 s2, 1
    s_cbranch_scc1 {name}_end
    s_load_dwordx2 s[16:17], s[0:1], 64
    s_waitcnt lgkmcnt(0)
    s_mov_b32 s20, s16
    s_mov_b32 s21, s17
    s_mov_b32 s22, 0x4000000
    s_mov_b32 s23, 0x20000
    v_lshlrev_b32 v1, 10, v0
    s_mov_b32 s24, {TR_BASE + (ka << 20) + wa * 64 + ia * 4}
    s_mov_b32 s25, {TR_BASE + (kb << 20) + wb * 64 + ib * 4}
    buffer_load_dword v2, v1, s[20:23], s24 offen
    buffer_load_dword v3, v1, s[20:23], s25 offen
    v_mov_b32 v4, 0
    v_mov_b32 v5, {-1 if reda == "min" else 0}
    v_mov_b32 v6, {-1 if redb == "min" else 0}
    ds_write_b32 v4, v5
    ds_write_b32 v4, v6 offset:4
    s_waitcnt vmcnt(0) lgkmcnt(0)
    s_barrier
    ds_{reda}_u32 v4, v2
    ds_{redb}_u32 v4, v3 offset:4
    s_waitcnt lgkmcnt(0)
    s_barrier
    ds_read_b64 v[6:7], v4
    s_waitcnt lgkmcnt(0)
    v_sub_u32 v6, v7, v6
    v_min_u32 v6, 0x2000, v6
    s_nop 0
    v_readfirstlane_b32 s26, v6
    s_memrealtime s[28:29]
    s_waitcnt lgkmcnt(0)
    s_mul_i32 s26, s26, {factor}""")
    a.label(f"{name}_spin")
    a(f"""s_memrealtime s[30:31]
    s_waitcnt lgkmcnt(0)
    s_sub_u32 s27, s30, s28
    s_cmp_lt_u32 s27, s26
    s_cbranch_scc1 {name}_spin""")
    a.label(f"{name}_end")
    a("s_endpgm")
    return (name, a.text(), 8, 1, 256, 64)
```

```python
from build import *
import asmlib, probe
asmlib.TRACE = True
t1, n1 = k1.gen_k1(); t2, n2 = k2.gen_k2(); t3, n3 = k2.gen_k3()
K1 = ("k1_kernel", t1, n1, 256, 512, k1.K1_LDS); K2 = ("k2_kernel", t2, n2, 256, 768, k2.K2_LDS); K3 = ("k3_kernel", t3, n3, 256, 256, k2.K3_LDS)
P = lambda *x: probe.gen_probe("p_kernel", *x)
assemble([K1, K2, K3, P(0,0,0, 2,1,0, 0)], "p_0.s")
assemble([K1, K2, K3, P(0,0,0, 2,1,0, 8)], "p_all.s")
assemble([K1, K2, K3, P(0,0,0, 0,1,0, 8)], "p_k1.s")
assemble([K1, K2, K3, P(1,0,0, 1,1,4, 8)], "p_k2.s")
assemble([K1, K2, K3, P(2,0,0, 2,1,0, 8)], "p_k3.s")
assemble([K1, K2, K3, P(0,0,0, 1,0,0, 8, False, "min", "min")], "p_k1g.s")
```

```python
from asmlib import *
import asmlib, struct

KB = 1024; MB = 1 << 20
F1, F2, F3, RS = 64*KB, 128*KB, 256*KB, 512*KB
QF, KF, VF, HF, OF, W2F, WOF = 1*MB, 3*MB, 5*MB, 7*MB, 14*MB, 16*MB, 18*MB
WS_BYTES = 19 * MB
LOG2E = 1.4426950408889634
def fbits(x): return "0x%08x" % struct.unpack("<I", struct.pack("<f", x))[0]
mm = "v_mfma_f32_32x32x16_bf16"

WB = 81920; CSX = 147456; STX = 149504; CNT = 150528; ONES = 151552; LDS_BYTES = 155648
XR = 131072
NVGPR = 168

sWS, sA, sB, sC = 20, 24, 28, 32
sRB, sCG, sWV, sW4, sH, sQB, sROT = 36, 37, 38, 39, 40, 41, 42

def srd(a, d, base, nbytes):
    a(f"""s_mov_b32 {s(d)}, {s(base)}
    s_mov_b32 {s(d+1)}, {s(base+1)}
    s_mov_b32 {s(d+2)}, {hex(nbytes)}
    s_mov_b32 {s(d+3)}, 0x20000""")

class VM:
    def __init__(self): self.ops = []
    def add(self, tag, n=1): self.ops += [tag] * n
    def cnt(self, *tags):
        last = max(i for i, t in enumerate(self.ops) if t in tags)
        return len(self.ops) - 1 - last

SPIN_MAX = 200000
def poll(a, lab, vaddr, soff, vt, first_wait=None):
    ld = f"buffer_load_dwordx2 {v(vt,2)}, {v(vaddr)}, {s(sWS,4)}, {soff} offen sc1"
    a(f"s_mov_b32 s58, {SPIN_MAX}")
    if first_wait is None: a(ld)
    a.label(lab)
    a(f"""s_waitcnt vmcnt(0)
    v_cmp_ne_u32 vcc, s18, {v(vt)}
    v_cmp_ne_u32 s[56:57], s19, {v(vt+1)}
    s_sub_u32 s58, s58, 1
    s_cbranch_scc1 {lab}_ok
    s_or_b64 vcc, vcc, s[56:57]
    s_cbranch_scc0 {lab}_ok
    s_sleep 1
    {ld}
    s_branch {lab}""")
    a.label(lab + "_ok")

def flag_store(a, soff, vt):
    a(f"""v_mov_b32 {v(vt)}, s18
    v_mov_b32 {v(vt+1)}, s19
    v_mov_b32 {v(vt+2)}, 0
    s_mov_b64 exec, 1
    buffer_store_dwordx2 {v(vt,2)}, {v(vt+2)}, {s(sWS,4)}, {soff} offen sc1
    s_mov_b64 exec, -1""")

def lds_signal(a, vcnt, vone):
    a(f"""s_mov_b64 exec, 1
    ds_add_u32 {v(vcnt)}, {v(vone)}
    s_mov_b64 exec, -1""")

def lds_wait(a, lab, vcnt, vt, st, target):
    a.label(lab)
    a(f"""ds_read_b32 {v(vt)}, {v(vcnt)}
    s_waitcnt lgkmcnt(0)
    v_readfirstlane_b32 {s(st)}, {v(vt)}
    s_nop 0
    s_cmp_ge_u32 {s(st)}, {target}
    s_cbranch_scc1 {lab}_ok
    s_sleep 1
    s_branch {lab}""")
    a.label(lab + "_ok")

def tr_pattern(a, dst, rowmul_h, t0, t1):
    a(f"""v_lshrrev_b32 {v(t0)}, 5, v0
    v_bfe_u32 {v(t1)}, v0, 2, 2
    v_lshl_add_u32 {v(t0)}, {v(t0)}, {3 if rowmul_h == 8 else 2}, {v(t1)}
    v_lshlrev_b32 {v(t0)}, 6, {v(t0)}
    v_bfe_u32 {v(t1)}, v0, 4, 1
    v_lshl_add_u32 {v(t0)}, {v(t1)}, 5, {v(t0)}
    v_and_b32 {v(t1)}, 3, v0
    v_lshl_add_u32 {v(dst)}, {v(t1)}, 3, {v(t0)}""")

def gen(name, dbg=(), load_prio=3, cons_prio=0, kv_prio=0, red_prio=3, ffn_prio=0, force_fallback=False, aprio=((0, 3), (3, 2), (5, 1), (7, 0))):
    a = Asm()
    L = lambda x: f"{name}_{x}"
    a(f"s_cmp_ge_u32 s2, 256\ns_cbranch_scc1 {L('end')}")
    stamp(a, 0)
    a(f"""s_load_dwordx4 s[4:7], s[0:1], 0
    s_load_dwordx2 s[16:17], s[0:1], 64
    s_load_dwordx4 s[12:15], s[0:1], 32
    s_load_dwordx2 s[8:9], s[0:1], 16
    s_load_dwordx2 s[10:11], s[0:1], 48
    v_lshrrev_b32 v1, 6, v0
    v_and_b32 v0, 63, v0
    s_and_b32 s3, s2, 1
    v_readfirstlane_b32 {s(sWV)}, v1
    s_lshl_b32 s3, s3, 3
    s_bfe_u32 {s(sRB)}, s2, 0x30003
    s_add_u32 {s(sRB)}, {s(sRB)}, s3
    s_bfe_u32 s3, s2, 0x20001
    s_lshl_b32 s3, s3, 2
    s_lshr_b32 {s(sCG)}, s2, 6
    s_add_u32 {s(sCG)}, {s(sCG)}, s3
    s_lshl_b32 s3, {s(sCG)}, 1
    s_add_u32 {s(sROT)}, s3, {s(sRB)}
    s_and_b32 {s(sW4)}, {s(sWV)}, 3
    v_lshlrev_b32 v1, 4, v0
    s_and_b32 s3, s2, 7
    s_lshl_b32 s3, s3, 2
    s_bfe_u32 {s(sH)}, s2, 0x20003
    s_add_u32 {s(sH)}, {s(sH)}, s3
    s_lshr_b32 {s(sQB)}, s2, 5
    s_cmp_ge_u32 {s(sWV)}, 4
    s_cbranch_scc1 {L('cons')}""")

    vX0, vX1, vWq, vW1 = 2, 3, 4, 5
    sSX, sMX, sSQ, sS1, sT, sU = 43, 44, 45, 46, 47, 48
    a(f"""s_setprio {load_prio}
    v_lshrrev_b32 v7, 3, v0
    v_lshlrev_b32 v7, 10, v7
    v_and_b32 v8, 7, v0
    v_lshrrev_b32 v9, 4, v0
    v_xor_b32 v8, v8, v9
    v_lshl_add_u32 {v(vX0)}, v8, 4, v7
    v_xor_b32 {v(vX1)}, 64, {v(vX0)}
    v_lshrrev_b32 v7, 2, v0
    v_and_b32 v8, 3, v0
    v_lshlrev_b32 v8, 4, v8
    s_movk_i32 {s(sT)}, 3072
    v_mad_u32_u24 {v(vWq)}, v7, {s(sT)}, v8
    s_movk_i32 {s(sT)}, 3584
    v_mad_u32_u24 {v(vW1)}, v7, {s(sT)}, v8
    s_lshl_b32 {s(sSX)}, {s(sRB)}, 2
    s_add_u32 {s(sSX)}, {s(sSX)}, {s(sW4)}
    s_lshl_b32 {s(sSX)}, {s(sSX)}, 15
    s_lshl_b32 {s(sMX)}, {s(sW4)}, 12
    s_mul_i32 {s(sSQ)}, {s(sW4)}, {16 * 3072}
    s_lshl_b32 {s(sT)}, {s(sCG)}, 6
    s_add_u32 {s(sSQ)}, {s(sSQ)}, {s(sT)}
    s_mul_i32 {s(sS1)}, {s(sW4)}, {16 * 3584}
    s_lshl_b32 {s(sT)}, {s(sCG)}, 8
    s_add_u32 {s(sS1)}, {s(sS1)}, {s(sT)}
    s_waitcnt lgkmcnt(0)""")
    srd(a, sA, 4, 2 * MB); srd(a, sB, 6, 512 * 3072)
    vm = VM()
    def sigma(gq):
        a(f"s_add_u32 {s(sU)}, {s(sROT)}, {gq}\ns_and_b32 {s(sU)}, {s(sU)}, 7")
    def X(gq, tag):
        sigma(gq)
        a(f"s_lshl_b32 {s(sU)}, {s(sU)}, 7\ns_add_u32 {s(sU)}, {s(sU)}, {s(sSX)}")
        for jj in range(4):
            a(f"""s_add_u32 m0, {s(sMX)}, {(gq % 5) * 16384 + jj * 1024}
            s_add_u32 {s(sT)}, {s(sU)}, {jj * 8192}
            buffer_load_dwordx4 {v(vX1 if jj & 1 else vX0)}, {s(sA,4)}, {s(sT)} offen lds""")
        vm.add(tag, 4)
    def W(g):
        if g < 8:
            sigma(g)
            a(f"""s_mul_i32 {s(sU)}, {s(sU)}, {64 * 3072}
            s_add_u32 m0, {s(sMX)}, {WB + (g % 4) * 16384}
            s_add_u32 {s(sU)}, {s(sU)}, {s(sSQ)}""")
            for t in range(3):
                a(f"buffer_load_dwordx4 {v(vWq)}, {s(sB,4)}, {s(sU)} offen offset:{t * 1024} lds")
            vm.add(g, 3)
        else:
            sigma(15 - g)
            a(f"s_mul_i32 {s(sU)}, {s(sU)}, {64 * 3584}")
            for t in range(4):
                a(f"s_add_u32 m0, {s(sMX)}, {WB + (g % 4) * 16384 + t * 960}")
                a(f"s_add_u32 {s(sU)}, {s(sU)}, {s(sS1)}" if t == 0 else "s_nop 0")
                a(f"buffer_load_dwordx4 {v(vW1)}, {s(sC,4)}, {s(sU)} offen offset:{t * 64} lds")
            vm.add(g, 4)
    def bar(g, st=None):
        a(f"s_waitcnt vmcnt({vm.cnt(g)})")
        if st: stamp(a, st)
        a("s_barrier")
    X(0, 0); W(0); X(1, 1); W(1)
    a("s_load_dwordx2 s[18:19], s[16:17], 0")
    srd(a, sWS, 16, WS_BYTES); srd(a, sC, 12, 512 * 3584)
    bar(0, 1); X(2, 2); W(2); X(3, 3); W(3)
    bar(1); X(4, 4); W(4); X(5, 5)
    bar(2); W(5); X(6, 6)
    bar(3); W(6); X(7, 7)
    bar(4); W(7)
    a(f"""s_waitcnt lgkmcnt(0)
    s_add_u32 s18, s18, 1
    s_add_u32 s19, s19, 1
    s_lshl_b32 s49, {s(sCG)}, 4
    s_add_u32 s49, s49, {s(sRB)}
    s_lshl_b32 s49, s49, 7
    s_add_u32 s49, s49, {F1}
    s_lshr_b32 s50, {s(sH)}, 1
    s_lshl_b32 s50, s50, 11
    s_add_u32 s50, s50, {F1}
    v_and_b32 v6, 15, v0
    v_lshlrev_b32 v6, 7, v6
    s_cmp_ge_u32 {s(sCG)}, 14
    s_cbranch_scc1 {L('load_rl')}""")
    vm_rl = VM(); vm_rl.ops = list(vm.ops)
    bar(5); W(8)
    bar(6); W(9)
    bar(7, 2); W(10)
    bar(8, 3); W(11)
    bar(9); W(12); X(2, 13)
    bar(10); W(13); X(1, 14)
    bar(11)
    a(f"s_cmp_lg_u32 {s(sW4)}, 0\ns_cbranch_scc1 {L('nof1')}")
    flag_store(a, "s49", 8)
    a.label(L('nof1'))
    W(14); X(0, 15)
    bar(12); W(15)
    bar(13)
    bar(14)
    a(f"buffer_load_dwordx2 v[8:9], v6, {s(sWS,4)}, s50 offen sc1"); vm.add("poll")
    bar(15, 4)
    poll(a, L('pq'), 6, "s50", 8, first_wait=True)
    stamp(a, 5)
    a(f"s_barrier\ns_branch {L('ffn')}")

    a.label(L('load_rl'))
    vm = vm_rl
    bar(5); bar(6); bar(7)
    a("s_barrier")
    a.label(L('relayout'))
    srd(a, sB, 14, 1792 * 1024); srd(a, sC, 8, 512 * 1024)
    a(f"""v_lshrrev_b32 v7, 2, v0
    v_and_b32 v8, 3, v0
    v_lshlrev_b32 v8, 4, v8
    v_lshl_add_u32 v10, v7, 10, v8
    s_mul_i32 s43, {s(sWV)}, 6144
    s_sub_u32 s44, {s(sCG)}, 14
    s_lshl_b32 s45, {s(sRB)}, 6""")
    tr_pattern(a, 11, 4, 7, 8)
    a(f"""v_add_u32 v11, s43, v11
    s_mul_i32 s46, s44, 56
    s_lshl_b32 s47, s44, 4
    s_mul_i32 s51, {s(sRB)}, 112
    s_lshl_b32 s52, {s(sRB)}, 5
    s_cmp_lt_u32 {s(sWV)}, 8
    s_cselect_b32 s53, 1, 0""")
    for j in range(6):
        a(f"s_add_u32 m0, s43, {j * 1024}")
        if j < 4:
            a(f"""s_add_u32 s54, {s(sWV)}, {12 * j}
            s_add_u32 s54, s54, s46
            s_lshl_b32 s55, s54, 14
            s_add_u32 s55, s55, s45
            buffer_load_dwordx4 v10, {s(sB,4)}, s55 offen lds""")
        elif j == 4:
            a(f"""s_cmp_eq_u32 s53, 0
            s_cbranch_scc1 {L('rl4o')}
            s_add_u32 s54, {s(sWV)}, 48
            s_add_u32 s54, s54, s46
            s_lshl_b32 s55, s54, 14
            s_add_u32 s55, s55, s45
            buffer_load_dwordx4 v10, {s(sB,4)}, s55 offen lds
            s_add_u32 s54, s54, s51
            s_lshl_b32 s54, s54, 10
            s_add_u32 s3, s54, {W2F}
            s_branch {L('rl4e')}""")
            a.label(L('rl4o'))
            a(f"""s_add_u32 s54, {s(sWV)}, 4
            s_add_u32 s54, s54, s47
            s_lshl_b32 s55, s54, 14
            s_add_u32 s55, s55, s45
            buffer_load_dwordx4 v10, {s(sC,4)}, s55 offen lds
            s_add_u32 s54, s54, s52
            s_lshl_b32 s54, s54, 10
            s_add_u32 s3, s54, {WOF}""")
            a.label(L('rl4e'))
        else:
            a(f"""s_add_u32 s54, {s(sWV)}, s47
            s_lshl_b32 s55, s54, 14
            s_add_u32 s55, s55, s45
            buffer_load_dwordx4 v10, {s(sC,4)}, s55 offen lds
            s_add_u32 s54, s54, s52
            s_lshl_b32 s54, s54, 10
            s_add_u32 s52, s54, {WOF}""")
    a(f"""s_add_u32 s54, {s(sWV)}, s46
    s_add_u32 s54, s54, s51
    s_lshl_b32 s54, s54, 10
    s_add_u32 s54, s54, {W2F}
    s_waitcnt vmcnt(6)
    s_barrier
    s_cmp_lg_u32 {s(sWV)}, 0
    s_cbranch_scc1 {L('rl_nof')}""")
    flag_store(a, "s49", 12)
    a.label(L('rl_nof'))
    a("s_waitcnt vmcnt(0)")
    for j in range(6):
        a(f"""ds_read_b64_tr_b16 {v(12 + 4*j, 2)}, v11 offset:{j * 1024}
        ds_read_b64_tr_b16 {v(14 + 4*j, 2)}, v11 offset:{j * 1024 + 512}""")
    for j in range(6):
        a(f"s_waitcnt lgkmcnt({10 - 2*j})")
        so = "s54" if j < 4 else ("s3" if j == 4 else "s52")
        a(f"buffer_store_dwordx4 {v(12 + 4*j, 4)}, v1, {s(sWS,4)}, {so} offen sc1")
        if j < 3: a(f"s_add_u32 s54, s54, {12 * 1024}")
    a(f"""s_cmp_ge_u32 {s(sWV)}, 4
    s_cbranch_scc1 {L('rl_cons')}""")
    poll(a, L('pq2'), 6, "s50", 8)
    a(f"s_barrier\ns_branch {L('ffn')}")
    a.label(L('rl_cons'))
    a(f"""s_barrier
    s_branch {L('attnq')}""")

    a.label(L('ffn'))
    a(f"s_setprio {kv_prio}")
    a(f"""s_lshr_b32 s43, {s(sW4)}, 1
    s_and_b32 s44, {s(sW4)}, 1
    s_lshl_b32 s45, s43, 21
    s_lshl_b32 s46, {s(sH)}, 16
    s_add_u32 s45, s45, s46
    s_lshl_b32 s46, s44, 15
    s_add_u32 s45, s45, s46
    s_add_u32 s45, s45, {KF}
    s_lshl_b32 s46, {s(sW4)}, 15""")
    def kv(g):
        a(f"s_add_u32 m0, s46, {g * 4096}\ns_add_u32 s47, s45, {g * 4096}")
        for i in range(4):
            a(f"buffer_load_dwordx4 v1, {s(sWS,4)}, s47 offen offset:{i * 1024} sc1 lds")
    kv(0); kv(1)
    a("s_waitcnt vmcnt(2)")
    stamp(a, 6)
    a("s_barrier")
    for g in range(2, 8): kv(g)
    a(f"""s_lshr_b32 s47, {s(sH)}, 1
    s_lshl_b32 s47, s47, 4
    v_min_u32 v6, 17, v0
    v_add_u32 v7, s47, v6
    v_subrev_u32 v8, 14, v6
    v_lshrrev_b32 v9, 1, v8
    s_lshl_b32 s47, {s(sQB)}, 1
    v_add_u32 v9, s47, v9
    v_lshlrev_b32 v9, 4, v9
    v_and_b32 v8, 1, v8
    v_add3_u32 v9, v9, v8, 14
    v_cmp_gt_u32 vcc, 14, v6
    s_lshl_b32 s49, {s(sRB)}, 4
    s_add_u32 s49, s49, {s(sCG)}
    v_cndmask_b32 v6, v9, v7, vcc
    v_lshlrev_b32 v6, 7, v6
    s_lshl_b32 s49, s49, 7
    s_add_u32 s49, s49, {F2}
    s_mov_b32 s50, {F2}
    s_mul_i32 s47, {s(sW4)}, 28
    s_lshl_b32 s52, {s(sQB)}, 1
    s_add_u32 s52, s52, s43
    s_xor_b32 s53, s52, 1
    s_lshl_b32 s54, {s(sH)}, 1
    s_add_u32 s54, s54, s44
    s_xor_b32 s55, s54, 1""")
    for i, base in enumerate((W2F, W2F, HF, HF)):
        a(f"""s_mul_i32 {s(52 + i)}, {s(52 + i)}, 112
        s_add_u32 {s(52 + i)}, {s(52 + i)}, s47
        s_lshl_b32 {s(52 + i)}, {s(52 + i)}, 10
        s_add_u32 {s(52 + i)}, {s(52 + i)}, {base}""")
    ACC = 8; RING = 72
    a(f"""v_mov_b32 v2, {CNT}
    v_mov_b32 v3, 1
    s_waitcnt vmcnt(0)
    s_barrier""")
    a(f"s_setprio {ffn_prio}\ns_cmp_lg_u32 {s(sW4)}, 0\ns_cbranch_scc1 {L('nof2')}")
    flag_store(a, "s49", 8)
    a.label(L('nof2'))
    poll(a, L('pf2'), 6, "s50", 8)
    stamp(a, 7)
    def floads(u):
        return [f"buffer_load_dwordx4 {v(RING + 16*u + 4*i, 4)}, v1, {s(sWS,4)}, {s(52 + i)} offen offset:{u * 1024} sc1" for i in range(4)]
    def fm(u, j, zero=False):
        d = v(ACC + 16*j, 16)
        return f"{mm} {d}, {v(RING + 16*u + 4*(j >> 1), 4)}, {v(RING + 16*u + 8 + 4*(j & 1), 4)}, {'0' if zero else d}"
    for u in range(4):
        for x in floads(u): a(x)
    def fit(first, last):
        if not last:
            for i in range(4): a(f"s_add_u32 {s(52 + i)}, {s(52 + i)}, 4096")
        for u in range(4):
            a(f"s_waitcnt vmcnt({12 - 4*u if last else 12})")
            for j in range(4): a(fm(u, j, first and u == 0))
            if not last:
                for x in floads(u): a(x)
    fit(True, False)
    a("s_mov_b32 s47, 5")
    a.label(L('floop'))
    fit(False, False)
    a(f"s_sub_u32 s47, s47, 1\ns_cmp_lg_u32 s47, 0\ns_cbranch_scc1 {L('floop')}")
    fit(False, True)
    stamp(a, 8)
    a(f"s_setprio {red_prio}")
    RR = 92
    a(f"""s_lshl_b32 s51, {s(sH)}, 1
    s_add_u32 s51, s51, s44
    s_lshl_b32 s47, s51, 7
    s_add_u32 s47, s47, {RS}
    v_and_b32 v7, 31, v0
    v_lshlrev_b32 v6, 2, v7
    buffer_load_dword {v(RR)}, v6, {s(sWS,4)}, s47 offen sc1""")
    for ph in (1, 2, 3, 0):
        a(f"""s_xor_b32 s47, {s(sW4)}, {ph}
        s_lshl_b32 s47, s47, 12
        s_add_u32 s47, s47, {XR}
        v_add_u32 v4, s47, v1""")
        if ph != 1:
            lds_wait(a, L(f'fw{ph}'), 2, 5, 48, 4 * ((ph - 1) & 3))
            for i in range(4): a(f"ds_read_b128 {v(RING + 4*i, 4)}, v4 offset:{1024 * i}")
            for i in range(4):
                a(f"s_waitcnt lgkmcnt({3 - i})")
                for k in range(4):
                    r = v(ACC + 16*ph + 4*i + k)
                    a(f"v_add_f32 {r}, {r}, {v(RING + 4*i + k)}")
        else:
            a("s_nop 1")
        if ph != 0:
            for i in range(4): a(f"ds_write_b128 v4, {v(ACC + 16*ph + 4*i, 4)} offset:{1024 * i}")
        lds_signal(a, 2, 3)
    stamp(a, 9)
    G, T, XB, PACC, FR = ACC, 24, 40, 48, 64
    srd(a, sB, 4, 2 * MB); srd(a, sA, 10, 2 * MB)
    a(f"""s_lshl_b32 s51, s51, 15
    s_lshl_b32 s47, {s(sQB)}, 1
    s_add_u32 s47, s47, s43
    s_lshl_b32 s47, s47, 6
    s_add_u32 s51, s51, s47
    s_add_u32 s52, s51, 16384
    v_lshrrev_b32 v4, 2, v0
    v_and_b32 v5, 3, v0
    v_lshlrev_b32 v5, 4, v5
    v_lshl_add_u32 v6, v4, 10, v5
    buffer_load_dwordx4 {v(XB,4)}, v6, {s(sB,4)}, s51 offen
    buffer_load_dwordx4 {v(XB+4,4)}, v6, {s(sB,4)}, s52 offen
    s_mul_i32 s47, {s(sW4)}, 2560
    s_add_u32 s47, s47, {XR}
    v_mul_u32_u24 v2, 80, v7
    v_lshrrev_b32 v3, 5, v0
    v_lshl_add_u32 v2, v3, 3, v2
    v_add_u32 v2, s47, v2
    v_mul_u32_u24 v4, 80, v4
    v_add3_u32 v4, v4, v5, s47
    s_lshl_b32 s47, s44, 15
    v_add_u32 {v(RR+2)}, s47, v1
    s_lshl_b32 s47, s43, 15
    s_add_u32 s47, s47, 65536
    v_add_u32 {v(RR+3)}, s47, v1
    s_lshl_b32 s53, {s(sQB)}, 16
    s_lshl_b32 s47, {s(sW4)}, 14
    s_add_u32 s53, s53, s47
    s_add_u32 s53, s53, {WOF}
    s_add_u32 s54, s47, 65536
    v_and_b32 v3, 7, v0
    v_lshlrev_b32 v3, 2, v3
    v_add_u32 v3, {s(sW4)}, v3
    v_bfe_u32 v5, v0, 3, 1
    v_lshl_add_u32 v3, v5, 5, v3
    v_lshlrev_b32 v3, 6, v3
    s_lshl_b32 s50, {s(sH)}, 12
    s_add_u32 s50, s50, {F3}
    s_lshl_b32 s55, {s(sH)}, 16
    s_lshl_b32 s47, {s(sW4)}, 10
    s_add_u32 s55, s55, s47
    s_add_u32 s55, s55, {OF}
    s_barrier
    s_barrier""")
    a("s_setprio 3")
    stamp(a, 10)
    for g in range(4):
        a(f"s_add_u32 m0, s54, {g * 4096}\ns_add_u32 s48, s53, {g * 4096}")
        for i in range(4):
            a(f"buffer_load_dwordx4 v1, {s(sWS,4)}, s48 offen offset:{i * 1024} sc1 lds")
    a("s_waitcnt vmcnt(18)")
    for i in range(16): a(f"v_mul_f32 {v(G+i)}, {v(G+i)}, {v(RR)}")
    for i in range(16): a(f"v_mul_f32 {v(T+i)}, {fbits(-LOG2E)}, {v(G+i)}")
    for i in range(16): a(f"v_exp_f32 {v(T+i)}, {v(T+i)}")
    for i in range(16): a(f"v_add_f32 {v(T+i)}, 1.0, {v(T+i)}")
    for i in range(16): a(f"v_rcp_f32 {v(T+i)}, {v(T+i)}")
    for i in range(16): a(f"v_mul_f32 {v(G+i)}, {v(G+i)}, {v(T+i)}")
    poll(a, L('pf3'), 3, "s50", RR)
    stamp(a, 11)
    for c in range(4):
        for hh in range(2):
            for tl in range(2):
                off = tl * 32768 + (8*c + 4*hh) * 1024
                a(f"""s_add_u32 m0, s47, {off}
                s_add_u32 s48, s55, {off}
                buffer_load_dwordx4 v1, {s(sWS,4)}, s48 offen sc1 lds""")
    for i in range(8):
        a(f"v_lshlrev_b32 {v(T+2*i)}, 16, {v(XB+i)}\nv_and_b32 {v(T+2*i+1)}, 0xffff0000, {v(XB+i)}")
    for c in range(4):
        a(f"s_waitcnt vmcnt({12 - 4*c})\ns_barrier")
        rd = []
        for k in range(8):
            ks = 8*c + k
            rd.append((f"ds_read_b128 {v(FR + 8*(k%3), 4)}, {v(RR+3)} offset:{ks * 1024}", f"ds_read_b128 {v(FR + 8*(k%3) + 4, 4)}, {v(RR+2)} offset:{ks * 1024}"))
        for k in range(3): a(rd[k][0]); a(rd[k][1])
        for k in range(8):
            a(f"s_waitcnt lgkmcnt({4 if k < 6 else 2 * (7 - k)})")
            cin = "0" if (c == 0 and k == 0) else v(PACC,16)
            a(f"{mm} {v(PACC,16)}, {v(FR + 8*(k%3), 4)}, {v(FR + 8*(k%3) + 4, 4)}, {cin}")
            if k < 5: a(rd[k+3][0]); a(rd[k+3][1])
    a(f"""s_or_b32 s48, s2, {s(sW4)}
    s_cmp_lg_u32 s48, 0
    s_cbranch_scc1 {L('now0')}""")
    flag_store(a, "0", FR)
    a.label(L('now0'))
    a("s_nop 8")
    stamp(a, 12)
    for i in range(8):
        r = v(PACC+2*i, 2)
        a(f"v_pk_mul_f32 {r}, {r}, {v(G+2*i, 2)}")
    for i in range(8): a(f"v_cvt_pk_bf16_f32 {v(XB+i)}, {v(PACC+2*i)}, {v(PACC+2*i+1)}")
    for i in range(4): a(f"ds_write_b64 v2, {v(XB+2*i, 2)} offset:{16*i}")
    a(f"""ds_read_b128 {v(FR+8,4)}, v4
    ds_read_b128 {v(FR+12,4)}, v4 offset:1280
    s_waitcnt lgkmcnt(0)""")
    for i in range(8):
        a(f"v_lshlrev_b32 {v(G+2*i)}, 16, {v(FR+8+i)}\nv_and_b32 {v(G+2*i+1)}, 0xffff0000, {v(FR+8+i)}")
    for i in range(8):
        a(f"v_pk_add_f32 {v(G+2*i,2)}, {v(G+2*i,2)}, {v(T+2*i,2)}")
    for i in range(8): a(f"v_cvt_pk_bf16_f32 {v(XB+i)}, {v(G+2*i)}, {v(G+2*i+1)}")
    a(f"""buffer_store_dwordx4 {v(XB,4)}, v6, {s(sA,4)}, s51 offen
    buffer_store_dwordx4 {v(XB+4,4)}, v6, {s(sA,4)}, s52 offen""")
    if asmlib.TRACE: a("s_waitcnt vmcnt(0)")
    stamp_end(a, 0, sWV)
    a("s_endpgm")

    a.label(L('cons'))
    if cons_prio: a(f"s_setprio {cons_prio}")
    AX, AW, SMA, SMI, SQ, CSA, CS2, BUF, AC, AC2, M4, CF = 12, 16, 20, 24, 25, 28, 32, 36, 84, 116, 148, 152
    R1, RQ, PK, R16, HPK = 160, 161, 68, 100, 36
    vK, vV, vST, vCNT = 164, 165, 166, 167
    OA, OB, SA, SB, PA, PB, QA, QB_, KK, VV = 84, 100, 116, 132, 52, 60, 68, 72, 76, 148
    sRO, sG, sDX, sDW, sTT = 43, 44, 45, 46, 47
    a(f"""v_and_b32 v2, 31, v0
    v_lshrrev_b32 v3, 5, v0
    v_bfe_u32 v4, v0, 1, 3
    v_xor_b32 v4, v4, v3
    v_lshlrev_b32 v4, 4, v4
    v_lshl_add_u32 v4, v2, 7, v4
    s_lshl_b32 s48, {s(sW4)}, 12
    v_add_u32 v4, s48, v4
    s_lshr_b32 {s(sRO)}, {s(sWV)}, 3""")
    tr_pattern(a, 5, 8, 6, 7)
    a(f"s_lshl_b32 s49, {s(sRO)}, 11\ns_add_u32 s49, s49, {WB}")
    for p in range(4):
        a(f"""s_add_u32 s48, {s(sW4)}, {p}
        s_and_b32 s48, s48, 3
        s_lshl_b32 s50, s48, 5
        v_xor_b32 {v(AX + p)}, s50, v4
        s_lshl_b32 s48, s48, 12
        s_add_u32 s48, s48, s49
        v_add_u32 {v(AW + p)}, s48, v5""")
    a(f"""v_lshrrev_b32 v6, 2, v0
    v_xor_b32 v6, v6, v0
    v_and_b32 v6, 8, v6
    v_and_or_b32 v6, v0, 6, v6
    v_mov_b32 v7, 0x3f803f80
    v_mov_b32 v8, 0
    v_cmp_eq_u32 vcc, 0, v6
    v_cmp_eq_u32 s[50:51], 4, v6
    v_and_b32 v9, 1, v0
    v_cndmask_b32 {v(SMA)}, v8, v7, vcc
    v_cndmask_b32 {v(SMA+1)}, v8, v7, vcc
    v_cndmask_b32 {v(SMA+2)}, v8, v7, s[50:51]
    v_cndmask_b32 {v(SMA+3)}, v8, v7, s[50:51]
    v_mul_u32_u24 v9, 0xaaaa, v9
    v_add_u32 {v(SMI)}, 0x4444, v9""")
    def qoffs():
        a(f"""s_lshl_b32 s51, {s(sQB)}, 3
        s_lshl_b32 s50, {s(sW4)}, 1
        s_add_u32 s51, s51, s50
        s_add_u32 s51, s51, {s(sRO)}
        s_lshl_b32 s50, {s(sH)}, 6
        s_add_u32 s54, s50, s51
        s_xor_b32 s55, s54, 1
        s_lshl_b32 s54, s54, 10
        s_lshl_b32 s55, s55, 10
        s_add_u32 s54, s54, {QF}
        s_add_u32 s55, s55, {QF}""")
    a(f"""v_and_b32 v5, 11, v0
    v_cmp_eq_u32 vcc, 0, v5
    s_lshl_b32 s48, {s(sW4)}, 10
    s_add_u32 s48, s48, {ONES}
    v_cndmask_b32 {v(BUF)}, v8, v7, vcc
    v_add_u32 v5, s48, v1
    v_mov_b32 {v(vCNT)}, {CNT}
    v_mov_b32 {v(BUF+1)}, {v(BUF)}
    v_mov_b32 {v(BUF+2)}, {v(BUF)}
    v_mov_b32 {v(BUF+3)}, {v(BUF)}
    ds_write_b32 {v(vCNT)}, v8
    ds_write_b128 v5, {v(BUF,4)}
    s_lshl_b32 s48, {s(sRO)}, 15
    v_add_u32 {v(vK)}, s48, v1
    v_and_b32 v5, 15, v0
    v_lshlrev_b32 v5, 4, v5
    v_lshl_add_u32 v7, v3, 9, v5
    s_add_u32 s48, s48, 65536
    v_add_u32 v7, s48, v7
    v_add_u32 v5, {ONES}, v5
    v_and_b32 v6, 16, v0
    v_cmp_eq_u32 vcc, 0, v6
    v_mov_b32 v6, 0x1000
    s_nop 0
    v_cndmask_b32 {v(vV)}, v5, v7, vcc
    v_cndmask_b32 {v(vST)}, v8, v6, vcc""")
    qoffs()
    for i in range(8): a(f"v_mov_b32 {v(CSA + i)}, 0")
    for i in range(64): a(f"v_mov_b32 {v(AC + i)}, 0")
    a(f"""v_mov_b32 {v(SQ)}, 0
    v_mov_b32 {v(SQ+1)}, 0
    s_lshl_b32 {s(sTT)}, {s(sRB)}, 2
    s_add_u32 {s(sTT)}, {s(sTT)}, {s(sW4)}
    s_waitcnt lgkmcnt(0)
    s_load_dwordx2 s[18:19], s[16:17], 0""")
    srd(a, sWS, 16, WS_BYTES)
    a(f"""s_mov_b32 s52, 16384
    s_mov_b32 s53, -16384
    s_mov_b32 {s(sG)}, 0
    s_waitcnt lgkmcnt(0)
    s_add_u32 s18, s18, 1
    s_add_u32 s19, s19, 1
    s_cmp_lg_u32 {s(sRO)}, 0""")
    stamp(a, 1)
    a(f"s_barrier")
    stamp(a, 2)
    a(f"s_cbranch_scc1 {L('qkvb')}")

    def reads2(p):
        b = BUF + 12 * p
        r = [f"ds_read_b128 {v(b + 8, 4)}, {v(AX + p)}"]
        for t in range(2):
            r += [f"ds_read_b64_tr_b16 {v(b + 4*t, 2)}, {v(AW + p)} offset:{t * 1024}",
                  f"ds_read_b64_tr_b16 {v(b + 4*t + 2, 2)}, {v(AW + p)} offset:{t * 1024 + 256}"]
        return r
    def reads1(p):
        b = BUF + 12 * p
        return [f"ds_read_b128 {v(b + 4, 4)}, {v(AX + p)}",
                f"ds_read_b64_tr_b16 {v(b, 2)}, {v(AW + p)}",
                f"ds_read_b64_tr_b16 {v(b + 2, 2)}, {v(AW + p)} offset:256"]
    def sm(b, acc): return f"v_smfmac_f32_16x16x64_bf16 {v(acc,4)}, {v(SMA,4)}, {v(b,8)}, {v(SMI)}"
    def deltas(ffn):
        if not ffn:
            a(f"s_cmp_eq_u32 {s(sG)}, 4\ns_cselect_b32 {s(sDX)}, -65536, s52")
        else:
            a(f"s_cmp_eq_u32 {s(sG)}, 10\ns_cselect_b32 {s(sDX)}, 65536, s53")
        a(f"""s_and_b32 s48, {s(sG)}, 3
        s_cmp_eq_u32 s48, 3
        s_cselect_b32 {s(sDW)}, -49152, s52
        s_add_u32 {s(sG)}, {s(sG)}, 1""")
    def adv(ps):
        for p in ps: a(f"v_add_u32 {v(AX + p)}, {s(sDX)}, {v(AX + p)}\nv_add_u32 {v(AW + p)}, {s(sDW)}, {v(AW + p)}")
    def stage_loop(lab, ffn, R, M, pre, burst=()):
        n = len(R(0))
        for p in range(4):
            if p not in pre:
                for x in R(p): a(x)
        a.label(L(lab))
        a(f"s_waitcnt lgkmcnt({min(15, 3 * n)})")
        for x in M(0): a(x)
        a(f"s_cmp_eq_u32 {s(sG)}, {15 if ffn else 7}\ns_waitcnt lgkmcnt({2 * n})")
        a(M(1)[0])
        a(f"s_cbranch_scc1 {L(lab + '_x')}")
        if ffn:
            a(f"s_cmp_lg_u32 {s(sG)}, 10\ns_cbranch_scc1 {L(lab + '_nw')}\ns_waitcnt vmcnt(0)")
            a.label(L(lab + '_nw'))
        deltas(ffn)
        adv([0, 1, 2, 3])
        a("s_waitcnt lgkmcnt(0)")
        for x in burst: a(x)
        a(M(1)[1])
        a("s_barrier")
        a(M(2)[0])
        for x in R(0): a(x)
        a(M(2)[1])
        for x in R(1): a(x)
        a(M(3)[0])
        for x in R(2): a(x)
        a(M(3)[1])
        for x in R(3): a(x)
        a(f"s_branch {L(lab)}")
        a.label(L(lab + '_x'))
        a(M(1)[1])
        a(f"s_waitcnt lgkmcnt({n})")
        for x in M(2): a(x)
        a("s_waitcnt lgkmcnt(0)")
        for x in M(3): a(x)
        for x in burst: a(x)
    def M2(acc, cs):
        def f(p):
            b = BUF + 12 * p
            r = [f"{mm} {v(acc + 16*t, 16)}, {v(b + 4*t, 4)}, {v(b + 8, 4)}, {v(acc + 16*t, 16)}" for t in range(2)]
            if p == 0: r.append(sm(b, cs))
            return r
        return f
    def cs_pack(src, t):
        a(f"""v_cvt_pk_bf16_f32 {v(t)}, {v(src)}, {v(src)}
        v_and_b32 {v(t)}, 0xffff0000, {v(t)}
        v_sub_f32 {v(t)}, {v(src)}, {v(t)}
        v_cvt_pk_bf16_f32 {v(t)}, {v(src)}, {v(t)}""")
    def cs_publish(CSA):
        a(f"""s_lshl_b32 s48, {s(sRO)}, 10
        s_lshl_b32 s49, {s(sW4)}, 2
        s_add_u32 s48, s48, s49
        s_add_u32 s48, s48, {CSX}
        v_add_u32 v5, s48, v1
        v_add_f32 v4, {v(CSA)}, {v(CSA+1)}""")
        cs_pack(4, 6)
        a("ds_write_b32 v5, v6")
    def cs_fetch():
        a(f"""s_lshl_b32 s48, {s(sRO)}, 10
        s_add_u32 s48, s48, {CSX}
        v_lshl_add_u32 v5, v2, 4, s48
        ds_read_b128 {v(CF,4)}, v5
        ds_read_b128 {v(CF+4,4)}, v5 offset:512""")
    def to_ffn1():
        a(f"s_mov_b32 {s(sDX)}, 0\ns_mov_b32 {s(sDW)}, -49152\ns_mov_b32 {s(sG)}, 8")
        adv([0, 1, 2, 3])

    stage_loop('qkva', False, reads2, M2(AC, CSA), ())
    stamp(a, 3)
    cs_publish(CSA)
    to_ffn1()
    a(f"""s_lshl_b32 s48, {s(sW4)}, 8
    s_add_u32 s48, s48, {STX}
    v_lshl_add_u32 v7, v2, 3, s48
    s_waitcnt lgkmcnt(0)
    s_barrier""")
    cs_fetch()
    a(f"""ds_read_b64 v[8:9], v7
    v_cmp_eq_u32 vcc, 0, v3
    s_lshl_b32 s48, {s(sCG)}, 7
    s_add_u32 s48, s48, {s(sTT)}
    s_lshl_b32 s48, s48, 10
    v_mov_b32 v10, 0
    s_waitcnt lgkmcnt(0)""")
    for i in range(4): a(f"v_cndmask_b32 {v(M4+i)}, v10, v8, vcc")
    a(f"""v_mov_b32 {v(R1)}, v9
    v_mul_f32 {v(RQ)}, {fbits(0.25 * LOG2E)}, v9""")
    for t in range(2): a(f"{mm} {v(AC + 16*t, 16)}, {v(CF + 4*t, 4)}, {v(M4,4)}, {v(AC + 16*t, 16)}")
    for x in reads2(0) + reads2(1): a(x)
    a("s_nop 0")
    for t in range(2):
        for i in range(16): a(f"v_mul_f32 {v(AC + 16*t + i)}, {v(AC + 16*t + i)}, {v(RQ if t == 0 else R1)}")
        for i in range(8): a(f"v_cvt_pk_bf16_f32 {v(PK + 8*t + i)}, {v(AC + 16*t + 2*i)}, {v(AC + 16*t + 2*i + 1)}")
        for sx in range(2):
            a(f"""s_add_u32 s49, s48, {(QF, KF)[t] + sx * 65536}
            buffer_store_dwordx4 {v(PK + 8*t + 4*sx, 4)}, v1, {s(sWS,4)}, s49 offen sc1""")
    a(f"s_branch {L('qkv_done')}")

    a.label(L('qkvb'))
    def M1(p):
        b = BUF + 12 * p
        return [f"{mm} {v(AC,16)}, {v(b + 4, 4)}, {v(b, 4)}, {v(AC,16)}", sm(b, CSA)]
    sqb = [f"v_dot2c_f32_bf16 {v(SQ + (i & 1))}, {v(BUF + 12*p + 4 + i)}, {v(BUF + 12*p + 4 + i)}" for p in range(4) for i in range(4)]
    stage_loop('qkvb_l', False, reads1, M1, (), sqb)
    a("s_nop 2")
    stamp(a, 3)
    a(f"""v_add_f32 v10, {v(SQ)}, {v(SQ+1)}
    v_add_f32 v4, {v(CSA)}, {v(CSA+1)}
    v_mov_b32 v11, v10
    v_mov_b32 v8, v4
    s_lshl_b32 s48, {s(sW4)}, 8
    s_add_u32 s48, s48, {STX}
    v_permlane32_swap_b32 v10, v11
    v_permlane32_swap_b32 v4, v8
    v_lshl_add_u32 v7, v2, 3, s48
    v_add_f32 v10, v10, v11
    v_mul_f32 v8, {fbits(-1.0/512)}, v8
    v_mov_b32 v11, {fbits(1.0/512)}
    v_mul_f32 v9, v8, v8
    v_fma_f32 v10, v10, v11, -v9
    v_max_f32 v10, 0, v10
    v_cvt_pk_bf16_f32 v10, v10, v10
    v_and_b32 v10, 0xffff0000, v10
    v_add_f32 v10, {fbits(1e-5)}, v10
    v_cvt_pk_bf16_f32 v10, v10, v10
    v_and_b32 v10, 0xffff0000, v10
    v_sqrt_f32 v10, v10
    v_cvt_pk_bf16_f32 v8, v8, v8
    v_cvt_pk_bf16_f32 v10, v10, v10
    v_and_b32 v10, 0xffff0000, v10
    v_rcp_f32 v9, v10
    v_cmp_eq_u32 vcc, 0, v3
    v_mov_b32 v10, 0
    ds_write_b64 v7, v[8:9]
    v_lshl_add_u32 v7, v3, 5, s48""")
    for i in range(4): a(f"v_cndmask_b32 {v(M4+i)}, v10, v8, vcc")
    cs_pack(4, CF)
    a(f"""v_mov_b32 {v(CF+1)}, 0
    v_mov_b32 {v(CF+2)}, 0
    v_mov_b32 {v(CF+3)}, 0""")
    to_ffn1()
    a(f"""{mm} {v(AC,16)}, {v(M4,4)}, {v(CF,4)}, {v(AC,16)}
    s_waitcnt lgkmcnt(0)
    s_barrier""")
    for i in range(4):
        for k in range(2):
            a(f"ds_read2_b32 {v(R16 + 4*i + 2*k, 2)}, v7 offset0:{16*i + 4*k + 1} offset1:{16*i + 4*k + 3}")
    for x in reads2(0): a(x)
    a(f"""s_lshl_b32 s48, {s(sCG)}, 7
    s_add_u32 s48, s48, {s(sTT)}
    s_lshl_b32 s48, s48, 10
    s_add_u32 s48, s48, {VF}
    v_bfe_u32 v8, v0, 4, 1
    v_lshlrev_b32 v8, 16, v8
    v_lshl_add_u32 v8, v3, 9, v8
    v_and_b32 v10, 15, v0
    v_lshl_add_u32 v8, v10, 4, v8
    s_cmp_lg_u32 {s(sCG)}, 0
    s_cbranch_scc1 {L('nors')}
    s_lshl_b32 s49, {s(sTT)}, 7
    s_add_u32 s49, s49, {RS}
    v_lshlrev_b32 v10, 2, v2
    buffer_store_dword v9, v10, {s(sWS,4)}, s49 offen sc1""")
    a.label(L('nors'))
    a("s_waitcnt lgkmcnt(5)")
    for i in range(16): a(f"v_mul_f32 {v(AC + i)}, {v(AC + i)}, {v(R16 + i)}")
    for i in range(8): a(f"v_cvt_pk_bf16_f32 {v(PK + i)}, {v(AC + 2*i)}, {v(AC + 2*i + 1)}")
    for sx in range(2):
        a(f"buffer_store_dwordx4 {v(PK + 4*sx, 4)}, v8, {s(sWS,4)}, s48 offen offset:{256 * sx} sc1")
    for x in reads2(1): a(x)

    a.label(L('qkv_done'))
    stamp(a, 4)
    a(f"""s_cmp_ge_u32 {s(sCG)}, 14
    s_cbranch_scc0 {L('ffn1')}
    s_waitcnt lgkmcnt(0)
    s_branch {L('relayout')}""")
    a.label(L('ffn1'))
    a("s_nop 0")
    stage_loop('ffn1l', True, reads2, M2(AC2, CS2), (0, 1))
    stamp(a, 5)
    cs_publish(CS2)
    a("s_waitcnt lgkmcnt(0)\ns_barrier")
    cs_fetch()
    def attn_init():
        for i in range(8): a(f"v_mov_b32 {v(PB + i)}, 0")
        a("s_nop 0")
        a(f"{mm} {v(OA,16)}, {v(PB,4)}, {v(PB,4)}, 0\n{mm} {v(OB,16)}, {v(PB,4)}, {v(PB,4)}, 0")
    def qload():
        a(f"""buffer_load_dwordx4 {v(QA,4)}, v1, {s(sWS,4)}, s54 offen sc1
        buffer_load_dwordx4 {v(QB_,4)}, v1, {s(sWS,4)}, s55 offen sc1""")
    qload()
    a(f"""s_mul_i32 s48, {s(sTT)}, 112
    s_lshl_b32 s49, {s(sCG)}, 3
    s_add_u32 s48, s48, s49
    s_lshl_b32 s49, {s(sRO)}, 2
    s_add_u32 s48, s48, s49
    s_lshl_b32 s48, s48, 10
    s_add_u32 s48, s48, {HF}
    s_waitcnt lgkmcnt(0)""")
    for t in range(2): a(f"{mm} {v(AC2 + 16*t, 16)}, {v(CF + 4*t, 4)}, {v(M4,4)}, {v(AC2 + 16*t, 16)}")
    attn_init()
    a("s_nop 0")
    for t in range(2):
        for i in range(8): a(f"v_cvt_pk_bf16_f32 {v(HPK + 8*t + i)}, {v(AC2 + 16*t + 2*i)}, {v(AC2 + 16*t + 2*i + 1)}")
        for i in range(8): a(f"v_pk_max_i16 {v(HPK + 8*t + i)}, {v(HPK + 8*t + i)}, 0")
        for sx in range(2):
            a(f"buffer_store_dwordx4 {v(HPK + 8*t + 4*sx, 4)}, v1, {s(sWS,4)}, s48 offen offset:{t * 2048 + sx * 1024} sc1")
    a(f"s_branch {L('attn')}")
    a.label(L('attnq'))
    a(f"s_lshr_b32 {s(sRO)}, {s(sWV)}, 3")
    qoffs()
    qload()
    attn_init()
    a("s_waitcnt vmcnt(0)")

    a.label(L('attn'))
    sIT = 44
    a(f"""s_mov_b32 {s(sIT)}, 0
    s_waitcnt lgkmcnt(0)""")
    stamp(a, 6)
    a("s_barrier")
    stamp(a, 7)
    a(f"""ds_read_b128 {v(KK,4)}, {v(vK)}
    ds_read_b128 {v(VV,4)}, {v(vV)}
    ds_read_b128 {v(VV+4,4)}, {v(vV)} offset:256
    ds_read_b128 {v(VV+8,4)}, {v(vV)}
    ds_read_b128 {v(VV+12,4)}, {v(vV)} offset:256
    ds_read_b128 {v(KK+4,4)}, {v(vK)} offset:1024
    v_lshrrev_b32 v5, 2, {v(vST)}
    v_add_u32 {v(vV)}, {v(vV)}, v5
    s_waitcnt vmcnt(4) lgkmcnt(5)""")
    a(f"""{mm} {v(SA,16)}, {v(KK,4)}, {v(QA,4)}, 0
    s_waitcnt lgkmcnt(1)
    s_nop 7
    s_nop 0""")
    def phase(S, P, mf, extra, filler):
        e = [f"v_exp_f32 {v(S+i)}, {v(S+i)}" for i in range(16)]
        c = [f"v_cvt_pk_bf16_f32 {v(P+i)}, {v(S+2*i)}, {v(S+2*i+1)}" for i in range(8)]
        seq = [mf[0], e[0], e[1]]
        for i in range(7):
            seq += [e[2*i+2], c[i], e[2*i+3]]
            if i == 0: seq += extra[:1]
            if i == 1: seq += [mf[1]]
            if i == 2: seq += extra[1:]
            if i == 4: seq += [mf[2]]
        seq += [filler, c[7]]
        for x in seq: a(x)
    a.label(L('aloop'))
    a(f"s_cmp_lg_u32 {s(sIT)}, 1\ns_cbranch_scc1 {L('nobar')}\ns_waitcnt vmcnt(0)")
    stamp(a, 8)
    a("s_barrier")
    a.label(L('nobar'))
    for thr, pr in (aprio or ()):
        a(f"s_cmp_lg_u32 {s(sIT)}, {thr}\ns_cbranch_scc1 {L(f'np{thr}')}\ns_setprio {pr}")
        a.label(L(f'np{thr}'))
    for u in range(4):
        b = u & 1
        K0, K1_, V0, V1 = KK + 4*b, KK + 4*(1-b), VV + 8*b, VV + 8*(1-b)
        phase(SA, PA,
              [f"{mm} {v(SB,16)}, {v(K0,4)}, {v(QB_,4)}, 0",
               f"{mm} {v(OB,16)}, {v(V1,4)}, {v(PB,4)}, {v(OB,16)}",
               f"{mm} {v(OB,16)}, {v(V1+4,4)}, {v(PB+4,4)}, {v(OB,16)}"],
              [], "s_waitcnt lgkmcnt(0)")
        phase(SB, PB,
              [f"{mm} {v(SA,16)}, {v(K1_,4)}, {v(QA,4)}, 0",
               f"{mm} {v(OA,16)}, {v(V0,4)}, {v(PA,4)}, {v(OA,16)}",
               f"{mm} {v(OA,16)}, {v(V0+4,4)}, {v(PA+4,4)}, {v(OA,16)}"],
              [f"ds_read_b128 {v(V1,4)}, {v(vV)} offset:{u * 1024}",
               f"ds_read_b128 {v(V1+4,4)}, {v(vV)} offset:{u * 1024 + 256}"],
              f"ds_read_b128 {v(K0,4)}, {v(vK)} offset:{(u + 2) * 1024}")
    a(f"""v_add_u32 {v(vK)}, 0x1000, {v(vK)}
    v_add_u32 {v(vV)}, {v(vST)}, {v(vV)}
    s_add_u32 {s(sIT)}, {s(sIT)}, 1
    s_cmp_lt_u32 {s(sIT)}, 8
    s_cbranch_scc1 {L('aloop')}
    {mm} {v(OB,16)}, {v(VV+8,4)}, {v(PB,4)}, {v(OB,16)}
    {mm} {v(OB,16)}, {v(VV+12,4)}, {v(PB+4,4)}, {v(OB,16)}
    s_mul_i32 s48, {s(sWV)}, 2304
    s_add_u32 s48, s48, {XR - 4 * 2304}
    s_xor_b32 s49, {s(sWV)}, 12
    s_mul_i32 s49, s49, 2304
    s_add_u32 s49, s49, {XR - 4 * 2304}
    v_add_u32 v5, s48, v1
    v_lshl_add_u32 v7, v0, 2, s48""")
    stamp(a, 9)
    lds_wait(a, L('aw'), vCNT, PA, 50, 16)
    a(f"""ds_write_b128 v5, {v(OB,4)}
    ds_write_b128 v5, {v(OB+4,4)} offset:1024
    ds_write_b32 v7, {v(OB+8)} offset:2048
    v_add_u32 v5, s49, v1
    v_lshl_add_u32 v7, v0, 2, s49
    s_waitcnt lgkmcnt(0)
    s_barrier""")
    stamp(a, 10)
    a(f"""ds_read_b128 {v(SB,4)}, v5
    ds_read_b128 {v(SB+4,4)}, v5 offset:1024
    ds_read_b32 {v(SB+8)}, v7 offset:2048
    s_lshl_b32 s48, s51, 5
    s_add_u32 s48, s48, {s(sH)}
    s_lshl_b32 s49, s48, 6
    s_add_u32 s49, s49, {F3}
    s_lshl_b32 s48, s48, 10
    s_add_u32 s48, s48, {OF}
    s_mov_b32 s52, {fbits(2.0**-60)}
    s_mov_b32 s53, {fbits(2.0**60)}
    s_mov_b32 s54, 0x7f800000
    s_waitcnt lgkmcnt(0)""")
    for i in range(9): a(f"v_add_f32 {v(OA+i)}, {v(OA+i)}, {v(SB+i)}")
    a(f"v_add_f32 v5, abs({v(OA)}), abs({v(OA+1)})")
    for i in range(2, 8): a(f"v_add_f32 v5, v5, abs({v(OA+i)})")
    a(f"""v_cmp_nlt_f32 s[56:57], s52, {v(OA+8)}
    v_cmp_ngt_f32 s[58:59], s53, {v(OA+8)}
    v_cmp_ngt_f32 vcc, s54, v5
    s_nop 0
    s_or_b64 s[56:57], s[56:57], s[58:59]
    s_or_b64 s[56:57], s[56:57], vcc""")
    a(f"s_branch {L('slow')}" if force_fallback else f"s_cbranch_scc1 {L('slow')}")
    a.label(L('fin'))
    a(f"v_rcp_f32 v6, {v(OA+8)}\ns_nop 0")
    for i in range(8): a(f"v_mul_f32 {v(OA+i)}, {v(OA+i)}, v6")
    for i in range(4): a(f"v_cvt_pk_bf16_f32 {v(PA+i)}, {v(OA+2*i)}, {v(OA+2*i+1)}")
    a(f"""buffer_store_dwordx4 {v(PA,4)}, v1, {s(sWS,4)}, s48 offen sc1
    s_barrier
    s_waitcnt vmcnt(0)""")
    stamp(a, 11)
    flag_store(a, "s49", 8)
    stamp_end(a, 0, sWV)
    a("s_endpgm")
    a.label(L('slow'))
    vM, vN, vT = 5, 6, 7
    a(f"""v_mov_b32 {v(vK)}, v1
    v_lshlrev_b32 v5, 3, {v(vST)}
    s_add_u32 s52, {s(sRO)}, 1
    v_mul_lo_u32 v5, v5, s52
    v_lshrrev_b32 v6, 2, {v(vST)}
    v_add_u32 v5, v5, v6
    v_sub_u32 {v(vV)}, {v(vV)}, v5
    v_lshrrev_b32 {v(vST)}, 2, {v(vST)}
    v_mov_b32 {v(vM)}, 0xff800000
    s_mov_b32 {s(sIT)}, 0""")
    for i in range(16): a(f"v_mov_b32 {v(OA + i)}, 0")
    a.label(L('sloop'))
    a(f"""ds_read_b128 {v(KK,4)}, {v(vK)}
    ds_read_b128 {v(VV,4)}, {v(vV)}
    ds_read_b128 {v(VV+4,4)}, {v(vV)} offset:256
    v_add_u32 {v(vK)}, 0x400, {v(vK)}
    v_add_u32 {v(vV)}, {v(vST)}, {v(vV)}
    s_waitcnt lgkmcnt(0)
    {mm} {v(SA,16)}, {v(KK,4)}, {v(QA,4)}, 0
    s_nop 11
    v_max3_f32 {v(vN)}, {v(SA)}, {v(SA+1)}, {v(vM)}""")
    for i in range(1, 8): a(f"v_max3_f32 {v(vN)}, {v(SA+2*i)}, {v(SA+2*i+1)}, {v(vN)}")
    a(f"""v_mov_b32 {v(vT)}, {v(vN)}
    s_nop 1
    v_permlane32_swap_b32 {v(vT)}, {v(vN)}
    s_nop 1
    v_max_f32 {v(vN)}, {v(vN)}, {v(vT)}
    v_sub_f32 {v(vT)}, {v(vM)}, {v(vN)}
    v_exp_f32 {v(vT)}, {v(vT)}
    v_mov_b32 {v(vM)}, {v(vN)}""")
    for i in range(16): a(f"v_sub_f32 {v(SA+i)}, {v(SA+i)}, {v(vN)}")
    for i in range(16): a(f"v_mul_f32 {v(OA+i)}, {v(OA+i)}, {v(vT)}")
    for i in range(16): a(f"v_exp_f32 {v(SA+i)}, {v(SA+i)}")
    a("s_nop 0")
    for i in range(8): a(f"v_cvt_pk_bf16_f32 {v(PA+i)}, {v(SA+2*i)}, {v(SA+2*i+1)}")
    a(f"""s_add_u32 {s(sIT)}, {s(sIT)}, 1
    s_cmp_lt_u32 {s(sIT)}, 64
    {mm} {v(OA,16)}, {v(VV,4)}, {v(PA,4)}, {v(OA,16)}
    {mm} {v(OA,16)}, {v(VV+4,4)}, {v(PA+4,4)}, {v(OA,16)}
    s_nop 11
    s_cbranch_scc1 {L('sloop')}
    s_branch {L('fin')}""")
    a.label(L('end'))
    a("s_endpgm")
    if dbg:
        i0 = a.lines.index(L('cons') + ":"); i1 = a.lines.index(L('attnq') + ":")
        lo = a.lines.index(L('relayout') + ":")
        out = []
        for i, x in enumerate(a.lines):
            if i0 < i < i1:
                if "nosm" in dbg and "smfmac" in x: continue
                if "nosq" in dbg and x.startswith("v_dot2c"): continue
                if "nord" in dbg and (x.startswith("ds_read_b64_tr") or (x.startswith("ds_read_b128") and x.split()[-1] in ("v12", "v13", "v14", "v15"))): continue
                if "notr" in dbg and x.startswith("ds_read_b64_tr"): continue
                if "nomm" in dbg and x.startswith("v_mfma"): continue
            if i < lo and "nodma" in dbg and x.endswith("lds"): continue
            out.append(x)
        a.lines = out
    return a.text()

NAME = "recurrent_scan__softmax_full_mha__dense_activation_relu__prompt"
HDR = open(f"cdna_kernels/{NAME}.s.ref").read().split("; Override launch")[0]
def write(path, strict=True, quiet=False, **kw):
    kn = NAME + "_kernel"
    t = gen("L", **kw)
    errs = lint(t, path)
    for e in ([] if quiet else errs): print(e)
    assert not (strict and errs)
    out = HDR + f"; @launch grid=(256,1,1) block=(768,1,1) lds={LDS_BYTES}\n" + '.amdgcn_target "amdgcn-amd-amdhsa--gfx950"\n' + khead(kn) + t + kdesc(kn, NVGPR)
    open(path, "w").write(out)

if __name__ == "__main__":
    write("f.s")
    write("f_slow.s", force_fallback=True)
    asmlib.TRACE = True
    write("f_trace.s")
    import sys
    for d in sys.argv[1:]:
        write(f"f_trace_{d}.s", strict=False, quiet=True, dbg=d.split("+"))
```

```python
import re

def v(i, n=1):
    return f"v{i}" if n == 1 else f"v[{i}:{i+n-1}]"
def s(i, n=1):
    return f"s{i}" if n == 1 else f"s[{i}:{i+n-1}]"

class Asm:
    def __init__(self):
        self.lines = []
    def __call__(self, txt):
        for ln in txt.split("\n"):
            ln = ln.strip()
            if ln:
                self.lines.append(ln)
    def label(self, name):
        self.lines.append(name + ":")
    def text(self):
        out = []
        for ln in self.lines:
            if ln.endswith(":") or ln.startswith("."):
                out.append(ln)
            else:
                out.append("    " + ln)
        return "\n".join(out) + "\n"

REG = re.compile(r"\b([vsa])(?:(\d+)\b|\[(\d+):(\d+)\])")
TRANS = ("v_exp_", "v_log_", "v_rcp_", "v_rsq_", "v_sqrt_", "v_sin_", "v_cos_")

def regs_of(op):
    op = op.strip()
    r = set()
    for m in REG.finditer(op):
        k = m.group(1)
        if m.group(2) is not None:
            r.add((k, int(m.group(2))))
        else:
            for i in range(int(m.group(3)), int(m.group(4)) + 1):
                r.add((k, i))
    if re.search(r"\bvcc\b", op): r.add(("s", "vcc"))
    if re.search(r"\bvcc_lo\b|\bvcc_hi\b", op): r.add(("s", "vcc"))
    if re.search(r"\bm0\b", op): r.add(("s", "m0"))
    if re.search(r"\bexec(_lo|_hi)?\b", op): r.add(("s", "exec"))
    return r

def split_ops(rest):
    ops = []; depth = 0; cur = ""
    for ch in rest:
        if ch == "[": depth += 1
        if ch == "]": depth -= 1
        if ch == "," and depth == 0:
            ops.append(cur.strip()); cur = ""
        else:
            cur += ch
    if cur.strip(): ops.append(cur.strip())
    return ops

class Ins:
    def __init__(self, txt):
        self.txt = txt
        t = txt.split(";")[0].strip()
        p = t.split(None, 1)
        self.op = p[0]
        rest = p[1] if len(p) > 1 else ""
        self.ops = split_ops(rest)
        op = self.op
        self.w = set(); self.r = set()
        self.kind = "other"
        self.mfma = op.startswith("v_mfma") or op.startswith("v_smfmac")
        self.valu = op.startswith("v_") and not self.mfma
        self.trans = op.startswith(TRANS)
        self.dot = op.startswith("v_dot")
        self.salu = op.startswith("s_")
        self.vmem = op.startswith(("buffer_", "global_"))
        self.ds = op.startswith("ds_")
        self.smem = op.startswith(("s_load", "s_memtime", "s_memrealtime", "s_buffer_load"))
        self.ldsdma = self.vmem and (" lds" in t or "_lds_" in op)
        self.dpp = "dpp" in op or "row_" in t or "quad_perm" in t
        self.sdwa = "sdwa" in op
        o = self.ops
        if self.mfma:
            self.D = regs_of(o[0]); self.A = regs_of(o[1]); self.B = regs_of(o[2]); self.C = regs_of(o[3].split()[0])
            if op.startswith("v_smfmac"):
                self.A = self.A | self.C; self.C = set(self.D)
            self.w = self.D; self.r = self.A | self.B | self.C
            self.passes = 8 if "32x32" in op else 4
        elif self.valu:
            if op.startswith("v_cmp"):
                self.w = regs_of(o[0]); self.r = set().union(*[regs_of(x) for x in o[1:]])
                if op.startswith("v_cmpx"): self.w.add(("s", "exec"))
            elif op.startswith(("v_permlane32_swap", "v_permlane16_swap", "v_swap")):
                self.w = regs_of(o[0]) | regs_of(o[1]); self.r = set(self.w)
            elif op.startswith(("v_add_co", "v_sub_co", "v_addc_co", "v_subb_co")):
                self.w = regs_of(o[0]) | regs_of(o[1]); self.r = set().union(*[regs_of(x) for x in o[2:]])
            elif op == "v_nop":
                pass
            else:
                self.w = regs_of(o[0]); self.r = set().union(*[regs_of(x) for x in o[1:]]) if len(o) > 1 else set()
                if op.startswith(("v_fmac", "v_dot2c", "v_pk_fmac", "v_writelane")) or "UNUSED_PRESERVE" in t:
                    self.r |= self.w
                if op.startswith("v_cndmask") and len(o) == 3: self.r.add(("s", "vcc"))
        elif self.vmem:
            if op.startswith(("buffer_inv", "buffer_wbl2")):
                pass
            elif "load" in op and not self.ldsdma:
                self.w = regs_of(o[0]); self.r = set().union(*[regs_of(x) for x in o[1:]])
                if "d16" in op: self.r |= self.w
            elif "atomic" in op and " sc0" in t:
                if op.startswith("buffer_"):
                    self.w = regs_of(o[0]); self.r = set().union(*[regs_of(x) for x in o])
                else:
                    self.w = regs_of(o[0]); self.r = set().union(*[regs_of(x) for x in o[1:]])
            else:
                self.r = set().union(*[regs_of(x) for x in o])
                if self.ldsdma: self.r.add(("s", "m0"))
            self.wide_store = ("store" in op) and ("x4" in op or "x3" in op)
            if self.wide_store:
                self.sdata = regs_of(o[0]) if op.startswith("buffer_") else regs_of(o[1])
        elif self.ds:
            if op.startswith(("ds_read", "ds_bpermute", "ds_permute", "ds_swizzle")) or "_rtn" in op:
                self.w = regs_of(o[0]); self.r = set().union(*[regs_of(x) for x in o[1:]])
            else:
                self.r = set().union(*[regs_of(x) for x in o])
        elif self.salu:
            if op.startswith(("s_cmp", "s_cbranch", "s_branch", "s_waitcnt", "s_nop", "s_barrier", "s_endpgm", "s_setprio", "s_sleep", "s_bitcmp")):
                self.r = set().union(*[regs_of(x) for x in o]) if o else set()
                if op.startswith("s_cbranch_vcc"): self.r.add(("s", "vcc"))
            else:
                self.w = regs_of(o[0]); self.r = set().union(*[regs_of(x) for x in o[1:]]) if len(o) > 1 else set()
                if "saveexec" in op: self.w.add(("s", "exec"))
                if op.startswith(("s_addk", "s_mulk", "s_cmov")): self.r |= self.w
        self.states = 1
        if op == "s_nop": self.states = int(o[0], 0) + 1
        self.target = o[0] if op.startswith(("s_cbranch", "s_branch")) else None

def vonly(x): return {r for r in x if r[0] in "va"}
def sonly(x): return {r for r in x if r[0] == "s"}

def need(p, c):
    n = 0
    if p.valu and not p.dot:
        wv = vonly(p.w); ws = sonly(p.w)
        if c.mfma and wv & c.r: n = max(n, 2)
        if p.trans and c.valu and not c.trans and wv & c.r: n = max(n, 1)
        if p.trans and c.trans and wv & c.r: n = max(n, 1)
        if c.op.startswith("v_permlane") and wv & c.r: n = max(n, 2)
        if c.op.startswith(("v_readlane", "v_readfirstlane")) and wv & c.r: n = max(n, 1)
        if c.dpp and wv & c.r: n = max(n, 2)
        if ws:
            if c.valu and ws & c.r: n = max(n, 2)
            if c.vmem and ws & c.r: n = max(n, 5)
            if c.salu and ws & c.r: n = max(n, 1)
            if ("s", "exec") in ws and (c.mfma or c.dpp or c.op.startswith(("v_permlane", "v_readlane", "v_readfirstlane"))): n = max(n, 5)
        if p.sdwa and c.valu and wv & (c.r | c.w): n = max(n, 1)
    if p.dot:
        wv = vonly(p.w)
        if c.dot and c.op == p.op:
            srcab = set().union(*[regs_of(x) for x in c.ops[1:3]])
            if wv & srcab: n = max(n, 3)
        elif wv & (c.r | c.w): n = max(n, 3)
    if p.mfma:
        big = {8: 12, 4: 8}[p.passes]
        if c.mfma:
            if p.D & (c.A | c.B): n = max(n, big)
            if p.D & c.C and not (p.D == c.C and p.passes == c.passes): n = max(n, big - 2)
            if p.D & c.D and not p.D & c.C: n = max(n, big - 2)
        elif (c.valu or c.vmem or c.ds) and p.D & (c.r | c.w): n = max(n, big)
        if c.valu and p.C & c.w: n = max(n, {8: 7, 4: 3}[p.passes])
    if p.salu and ("s", "m0") in p.w and c.ldsdma: n = max(n, 1)
    if p.vmem and getattr(p, "wide_store", False):
        if p.sdata & c.w: n = max(n, 2 if (c.valu or c.mfma) else 1)
    return n

def lint(text, name="?"):
    ins = []; labels = {}
    for ln in text.split("\n"):
        t = ln.split(";")[0].strip()
        if not t or t.startswith("."): continue
        if t.endswith(":"):
            labels[t[:-1]] = len(ins); continue
        ins.append(Ins(t))
    def succ(i):
        x = ins[i]
        if x.op == "s_endpgm": return []
        if x.op == "s_branch": return [labels[x.target]]
        r = [i + 1] if i + 1 < len(ins) else []
        if x.target: r.append(labels[x.target])
        return r
    errs = []
    for i, p in enumerate(ins):
        if not (p.valu or p.mfma or p.vmem or (p.salu and ("s", "m0") in p.w)): continue
        stack = [(j, 0) for j in succ(i)]; seen = set()
        while stack:
            j, d = stack.pop()
            if (j, d) in seen or d > 13: continue
            seen.add((j, d))
            c = ins[j]
            n = need(p, c)
            if n > d: errs.append(f"[{name}] hazard: need {n} have {d}: '{p.txt}' -> '{c.txt}'")
            for k in succ(j): stack.append((k, d + c.states))
    seen = set(); stack = [(0, (), (), False)]
    steps = 0
    while stack:
        i, vm, lg, sm = stack.pop()
        key = (i, vm, lg, sm)
        if key in seen: continue
        seen.add(key); steps += 1
        if steps > 400000:
            errs.append(f"[{name}] waitcnt walk gave up"); break
        x = ins[i]
        touched = x.r | x.w
        for q, nm in ((vm, "vm"), (lg, "lgkm")):
            for dst in q:
                if dst and set(dst) & touched:
                    if (x.vmem and nm == "vm" or x.ds and nm == "lgkm") and not set(dst) & x.r: continue
                    errs.append(f"[{name}] missing {nm} wait: '{x.txt}' touches {sorted(set(dst) & touched, key=str)[:2]}")
        if x.op == "s_waitcnt":
            t = " ".join(x.ops)
            m = re.search(r"vmcnt\((\d+)\)", t)
            if m:
                n = int(m.group(1)); vm = vm[len(vm) - n:] if n < len(vm) else vm
                if n == 0: vm = ()
            m = re.search(r"lgkmcnt\((\d+)\)", t)
            if m:
                n = int(m.group(1))
                if n == 0: lg = (); sm = False
                elif not sm and n < len(lg): lg = lg[len(lg) - n:]
        elif x.vmem and not x.op.startswith(("buffer_inv", "buffer_wbl2")):
            vm = (vm + (tuple(sorted(x.w, key=str)),))[-64:]
        elif x.ds:
            lg = (lg + (tuple(sorted(x.w, key=str)),))[-32:]
        elif x.smem:
            lg = (lg + (tuple(sorted(x.w, key=str)),))[-32:]; sm = True
        for k in succ(i): stack.append((k, vm, lg, sm))
    out = []
    for e in errs:
        if e not in out: out.append(e)
    return out

def kdesc(name, vgpr, sgpr=96, accum=None):
    if accum is None: accum = (vgpr + 3) // 4 * 4
    return f""".section .rodata,"a"
.p2align 6
.amdhsa_kernel {name}
  .amdhsa_next_free_vgpr {vgpr}
  .amdhsa_next_free_sgpr {sgpr}
  .amdhsa_accum_offset {accum}
  .amdhsa_group_segment_fixed_size 0
  .amdhsa_kernarg_size 72
  .amdhsa_user_sgpr_count 2
  .amdhsa_user_sgpr_kernarg_segment_ptr 1
  .amdhsa_system_sgpr_workgroup_id_x 1
  .amdhsa_float_denorm_mode_32 3
.end_amdhsa_kernel
"""

def khead(name):
    return f""".text
.globl {name}
.p2align 8
.type {name},@function
{name}:
"""


TRACE = False
LITE = False
LITE_SET = ()
RT_AT = 0
TR_BASE = 32 << 20
def stamp(a, i):
    if not TRACE: return
    if LITE:
        if i == 0: a("s_memrealtime s[64:65]")
        elif i in LITE_SET: a(f"s_memrealtime s[{68 + 2*i}:{69 + 2*i}]\ns_waitcnt lgkmcnt(0)")
        return
    if i == 0:
        a("s_memrealtime s[64:65]")
        for k in range(1, 13): a(f"s_mov_b32 s{68 + 2*k}, 0")
    if i == RT_AT and i: a("s_memrealtime s[66:67]")
    a(f"s_memtime s[{68 + 2*i}:{69 + 2*i}]\ns_waitcnt lgkmcnt(0)")
def stamp_end(a, kidx, swave, addwave=0):
    if not TRACE: return
    if not RT_AT: a("s_memrealtime s[66:67]")
    a(f"""s_memtime s[94:95]
    s_waitcnt lgkmcnt(0)
    s_mov_b32 s60, s16
    s_mov_b32 s61, s17
    s_mov_b32 s62, 0x4000000
    s_mov_b32 s63, 0x20000
    s_lshl_b32 s65, s2, 4
    s_add_u32 s65, s65, s{swave}
    s_add_u32 s65, s65, {addwave}
    s_lshl_b32 s65, s65, 6
    s_add_u32 s65, s65, {TR_BASE + (kidx << 20)}
    s_mov_b64 exec, 1
    v_mov_b32 v0, 0""")
    regs = [64, 66] + ([68 + 2*k for k in LITE_SET] if LITE else [68 + 2*k for k in range(14)])
    for k, r in enumerate(regs):
        a(f"v_mov_b32 v1, s{r}\nbuffer_store_dword v1, v0, s[60:63], s65 offen offset:{4*k}")
```

```python
from asmlib import *
import asmlib, struct

KB = 1024; MB = 1 << 20
O_FULL, O_FREE, O_FCNT, O_F2C, O_F1C, O_GO, O_KV = 0, 16, 48, 52, 56, 60, 64
F1, F2, F3, RS = 64*KB, 192*KB, 320*KB, 512*KB
QF, KF, VF, HF, OF, W2F, WOF = 1*MB, 3*MB, 5*MB, 7*MB, 14*MB, 16*MB, 18*MB
WS_BYTES = 19 * MB
LOG2E = 1.4426950408889634
def fbits(x): return "0x%08x" % struct.unpack("<I", struct.pack("<f", x))[0]
mm = "v_mfma_f32_32x32x16_bf16"

WB = 81920; CSX = 147456; STX = 149504; CNT = 150528; RLS = 131072; ONES = 160256; LDS_BYTES = 163840
XR = 131072
WIN = [65536, 49152, 81920, 32768, 98304, 16384, 114688, 0]
WIN_FREE = [12, 13, 13, 14, 14, 15, 15, 16]
PRO = 150784
NVGPR = 168

sWS, sA, sB, sC = 20, 24, 28, 32
sRB, sCG, sWV, sW4, sH, sQB, sROT = 36, 37, 38, 39, 40, 41, 42

def srd(a, d, base, nbytes):
    a(f"""s_mov_b32 {s(d)}, {s(base)}
    s_mov_b32 {s(d+1)}, {s(base+1)}
    s_mov_b32 {s(d+2)}, {hex(nbytes)}
    s_mov_b32 {s(d+3)}, 0x20000""")

class VM:
    def __init__(self): self.ops = []
    def add(self, tag, n=1): self.ops += [tag] * n
    def cnt(self, *tags):
        last = max(i for i, t in enumerate(self.ops) if t in tags)
        return len(self.ops) - 1 - last

SPIN_MAX = 200000
def poll(a, lab, vaddr, soffs, vt, sleep=1, lanes=None, mask=None, fill=None):
    if isinstance(soffs, str): soffs = [soffs]
    a(f"s_mov_b32 s58, {SPIN_MAX}")
    if mask: a(f"s_mov_b64 exec, {mask}")
    elif lanes: a(f"s_mov_b64 exec, {hex((1 << lanes) - 1)}" if lanes <= 32 else f"s_mov_b32 exec_hi, {hex((1 << (lanes - 32)) - 1)}")
    if fill:
        m = hex((1 << lanes) - 1)
        a(f"buffer_load_dwordx2 {v(vt, 2)}, {v(vaddr)}, {s(sWS,4)}, {soffs[0]} offen sc1\ns_mov_b64 exec, -1")
        fill()
        a(f"s_mov_b64 exec, {m}\ns_branch {lab}_chk")
    a.label(lab)
    for n, so in enumerate(soffs):
        a(f"buffer_load_dwordx2 {v(vt + 2*n, 2)}, {v(vaddr)}, {s(sWS,4)}, {so} offen sc1")
    if fill: a.label(lab + "_chk")
    a("s_waitcnt vmcnt(0)")
    for n in range(len(soffs)):
        a(f"v_xor_b32 {v(vt + 2*n)}, s18, {v(vt + 2*n)}\nv_xor_b32 {v(vt + 2*n + 1)}, s19, {v(vt + 2*n + 1)}")
    for n in range(1, len(soffs)):
        a(f"v_or3_b32 {v(vt)}, {v(vt)}, {v(vt + 2*n)}, {v(vt + 2*n + 1)}")
    a(f"""v_or_b32 {v(vt)}, {v(vt)}, {v(vt + 1)}
    v_cmp_ne_u32 vcc, 0, {v(vt)}
    s_sub_u32 s58, s58, 1
    s_cbranch_scc1 {lab}_ok
    s_cbranch_vccz {lab}_ok
    s_sleep {sleep}
    s_branch {lab}""")
    a.label(lab + "_ok")
    if lanes: a("s_mov_b64 exec, -1")

def flag_store(a, soff, vt):
    a(f"""v_mov_b32 {v(vt)}, s18
    v_mov_b32 {v(vt+1)}, s19
    v_mov_b32 {v(vt+2)}, 0
    s_mov_b64 exec, 1
    buffer_store_dwordx2 {v(vt,2)}, {v(vt+2)}, {s(sWS,4)}, {soff} offen sc1
    s_mov_b64 exec, -1""")

def lds_signal(a, vcnt, vone):
    a(f"""s_mov_b64 exec, 1
    ds_add_u32 {v(vcnt)}, {v(vone)}
    s_mov_b64 exec, -1""")

def lds_wait(a, lab, vcnt, vt, st, target):
    a.label(lab)
    a(f"""ds_read_b32 {v(vt)}, {v(vcnt)}
    s_waitcnt lgkmcnt(0)
    v_readfirstlane_b32 {s(st)}, {v(vt)}
    s_nop 0
    s_cmp_ge_u32 {s(st)}, {target}
    s_cbranch_scc1 {lab}_ok
    s_sleep 1
    s_branch {lab}""")
    a.label(lab + "_ok")

def lds_ge(a, lab, vaddr, vt, need, off=0, pre=False, pre_s=None, sleep=1):
    if pre_s: a(pre_s)
    if not pre:
        a.label(lab)
        a(f"""ds_read_b32 {v(vt)}, {v(vaddr)} offset:{off}
        s_waitcnt lgkmcnt(0)""")
        a(f"""v_cmp_gt_u32 vcc, {need}, {v(vt)}
        s_nop 0
        s_cbranch_vccz {lab}_ok
        s_sleep {sleep}
        s_branch {lab}""")
        a.label(lab + "_ok")

def flag_push(a, vaddr, vt, lanes, base):
    a(f"""v_mov_b32 {v(vt)}, s18
    v_mov_b32 {v(vt+1)}, s19
    s_mov_b32 s48, {base}""")
    a(f"s_mov_b64 exec, {hex((1 << lanes) - 1)}" if lanes <= 32 else f"s_mov_b32 exec_hi, {hex((1 << (lanes - 32)) - 1)}")
    a(f"""buffer_store_dwordx2 {v(vt,2)}, {v(vaddr)}, {s(sWS,4)}, s48 offen sc1
    s_mov_b64 exec, -1""")

def arrive(a, lab, vcnt0, vt, off, last, addr, lanes, base):
    a(f"""v_mov_b32 {v(vt)}, 1
    s_mov_b64 exec, 1
    ds_add_rtn_u32 {v(vt)}, {v(vcnt0)}, {v(vt)} offset:{off}
    s_mov_b64 exec, -1""")
    addr(vt + 2, vt + 1)
    a(f"""s_waitcnt lgkmcnt(0)
    v_readfirstlane_b32 s49, {v(vt)}
    s_nop 0
    s_cmp_lg_u32 s49, {last}
    s_cbranch_scc1 {lab}""")
    flag_push(a, vt + 2, vt, lanes, base)
    a.label(lab)

def f2_arrive(a, lab, vcnt0, vt):
    def addr(d, t):
        a(f"""s_lshr_b32 s48, {s(sRB)}, 1
        s_lshl_b32 s48, s48, 9
        s_and_b32 s49, {s(sRB)}, 1
        s_add_u32 s49, s49, 1
        s_lshl_b32 s49, s49, 7
        s_add_u32 s48, s48, s49
        v_lshl_add_u32 {v(d)}, v0, 12, s48
        s_lshl_b32 s48, {s(sRB)}, 13
        v_and_b32 {v(t)}, 15, v0
        v_cmp_gt_u32 vcc, 32, v0
        v_lshl_add_u32 {v(t)}, {v(t)}, 9, s48
        s_lshl_b32 s48, {s(sCG)}, 3
        v_cndmask_b32 {v(d)}, {v(t)}, {v(d)}, vcc
        v_add_u32 {v(d)}, s48, {v(d)}""")
    arrive(a, lab, vcnt0, vt, O_F2C, 11, addr, 48, F2)

def tr_pattern(a, dst, rowmul_h, t0, t1):
    a(f"""v_lshrrev_b32 {v(t0)}, 5, v0
    v_bfe_u32 {v(t1)}, v0, 2, 2
    v_lshl_add_u32 {v(t0)}, {v(t0)}, {3 if rowmul_h == 8 else 2}, {v(t1)}
    v_lshlrev_b32 {v(t0)}, 6, {v(t0)}
    v_bfe_u32 {v(t1)}, v0, 4, 1
    v_lshl_add_u32 {v(t0)}, {v(t1)}, 5, {v(t0)}
    v_and_b32 {v(t1)}, 3, v0
    v_lshl_add_u32 {v(dst)}, {v(t1)}, 3, {v(t0)}""")

def gen(name, dbg=(), contig=False, hin=False, p3sleep=1, p3pre=0, p3bar=True, s_prio=2, hold=False, cpf=False, late_win=17, bx_prio=None, late_silu=True, gap_prio=0, mpos=(2, 6, 10), xpos=(8, 9, 10), h_it=0, sl0=1, sl1=2, sl2=8, ngo=16, f2_it=1, osc='', hold_at=12, f1sub=True, psleep=4, pfw1=4, pfd=2, norot=True, pf=0, pfkv=False, lookq=1, lookf=1, spf=0, sq_dot=True, epi_prio=3,
        load_prio=1, cons_prio=1, b_prio=0, kv_prio=3, red_prio=3, ffn_prio=0, force_fallback=False, p0a=0, p0b=3, aprio=((1, 2), (4, 1), (7, 0))):
    assert not contig
    a = Asm()
    L = lambda x: f"{name}_{x}"
    a.label(L('start'))
    a(f"s_cmp_ge_u32 s2, 256\ns_cbranch_scc1 {L('end')}")
    stamp(a, 0)
    a(f"""s_load_dwordx4 s[4:7], s[0:1], 0
    s_load_dwordx2 s[16:17], s[0:1], 64
    s_load_dwordx4 s[12:15], s[0:1], 32
    s_load_dwordx2 s[8:9], s[0:1], 16
    s_load_dwordx2 s[10:11], s[0:1], 48
    v_lshrrev_b32 v1, 6, v0
    v_and_b32 v0, 63, v0
    s_and_b32 s3, s2, 1
    v_readfirstlane_b32 {s(sWV)}, v1
    s_lshl_b32 s3, s3, 3
    s_bfe_u32 {s(sRB)}, s2, 0x30003
    s_add_u32 {s(sRB)}, {s(sRB)}, s3
    s_bfe_u32 s3, s2, 0x20001
    s_lshl_b32 s3, s3, 2
    s_lshr_b32 {s(sCG)}, s2, 6
    s_add_u32 {s(sCG)}, {s(sCG)}, s3
    s_lshl_b32 s3, {s(sCG)}, 1
    {"s_mov_b32 " + s(sROT) + ", 0" if norot or "norot" in dbg else "s_add_u32 " + s(sROT) + ", s3, " + s(sRB)}
    s_and_b32 {s(sW4)}, {s(sWV)}, 3
    v_lshlrev_b32 v1, 4, v0
    s_and_b32 s3, s2, 7
    s_lshl_b32 s3, s3, 2
    s_bfe_u32 {s(sH)}, s2, 0x20003
    s_add_u32 {s(sH)}, {s(sH)}, s3
    s_lshr_b32 {s(sQB)}, s2, 5
    s_cmp_ge_u32 {s(sWV)}, 4
    s_cbranch_scc1 {L('cons')}""")

    vX0, vX1, vWq, vW1 = 2, 3, 4, 5
    sSX, sMX, sSQ, sS1, sT, sU = 43, 44, 45, 46, 47, 48
    a(f"""s_setprio {load_prio}
    v_lshrrev_b32 v7, 3, v0
    v_lshlrev_b32 v7, 10, v7
    v_and_b32 v8, 7, v0
    v_lshrrev_b32 v9, 4, v0
    v_xor_b32 v8, v8, v9
    v_lshl_add_u32 {v(vX0)}, v8, 4, v7
    v_xor_b32 {v(vX1)}, 64, {v(vX0)}
    v_lshrrev_b32 v7, 2, v0
    v_and_b32 v8, 3, v0
    v_lshlrev_b32 v8, 4, v8
    s_movk_i32 {s(sT)}, 3072
    v_mad_u32_u24 {v(vWq)}, v7, {s(sT)}, v8
    s_movk_i32 {s(sT)}, 3584
    v_mad_u32_u24 {v(vW1)}, v7, {s(sT)}, v8
    s_lshl_b32 {s(sSX)}, {s(sRB)}, 2
    s_add_u32 {s(sSX)}, {s(sSX)}, {s(sW4)}
    s_lshl_b32 {s(sSX)}, {s(sSX)}, 15
    s_lshl_b32 {s(sMX)}, {s(sW4)}, 12
    s_mul_i32 {s(sSQ)}, {s(sW4)}, {16 * 3072}
    s_mul_i32 {s(sT)}, {s(sCG)}, {192 if contig else 64}
    s_add_u32 {s(sSQ)}, {s(sSQ)}, {s(sT)}
    s_mul_i32 {s(sS1)}, {s(sW4)}, {16 * 3584}
    s_lshl_b32 {s(sT)}, {s(sCG)}, 8
    s_add_u32 {s(sS1)}, {s(sS1)}, {s(sT)}
    s_waitcnt lgkmcnt(0)""")
    srd(a, sA, 4, 2 * MB); srd(a, sB, 6, 512 * 3072)
    vm = VM()
    def sigma(gq):
        a(f"s_add_u32 {s(sU)}, {s(sROT)}, {gq}\ns_and_b32 {s(sU)}, {s(sU)}, 7")
    def X(gq, tag):
        sigma(gq)
        a(f"s_lshl_b32 {s(sU)}, {s(sU)}, 7\ns_add_u32 {s(sU)}, {s(sU)}, {s(sSX)}")
        for jj in range(4):
            a(f"""s_add_u32 m0, {s(sMX)}, {(gq % 5) * 16384 + jj * 1024}
            s_add_u32 {s(sT)}, {s(sU)}, {jj * 8192}
            buffer_load_dwordx4 {v(vX1 if jj & 1 else vX0)}, {s(sA,4)}, {s(sT)} offen lds""")
        vm.add(tag, 4)
    def W(g):
        if g < 8:
            sigma(g)
            a(f"s_mul_i32 {s(sU)}, {s(sU)}, {64 * 3072}")
            for t in range(3):
                co = 64 if contig else 1024
                a(f"s_add_u32 m0, {s(sMX)}, {WB + (g % 4) * 16384 + t * (1024 - co)}")
                a(f"s_add_u32 {s(sU)}, {s(sU)}, {s(sSQ)}" if t == 0 else "s_nop 0")
                a(f"buffer_load_dwordx4 {v(vWq)}, {s(sB,4)}, {s(sU)} offen offset:{t * co} lds")
            vm.add(g, 3)
        else:
            sigma(15 - g)
            a(f"s_mul_i32 {s(sU)}, {s(sU)}, {64 * 3584}")
            for t in range(4):
                a(f"s_add_u32 m0, {s(sMX)}, {WB + (g % 4) * 16384 + t * 960}")
                a(f"s_add_u32 {s(sU)}, {s(sU)}, {s(sS1)}" if t == 0 else "s_nop 0")
                a(f"buffer_load_dwordx4 {v(vW1)}, {s(sC,4)}, {s(sU)} offen offset:{t * 64} lds")
            vm.add(g, 4)
    vFR, vMY, vVAL, vT = 10, 11, 12, 13
    def signal(val):
        a(f"v_mov_b32 {v(vVAL)}, {val}\nds_write_b32 {v(vMY)}, {v(vVAL)}")
    def landed(g, st=None):
        a(f"s_waitcnt vmcnt({vm.cnt(g)})")
        signal(g + 1)
        if "ld" in dbg: st = {0: 1, 1: 2, 2: 3, 4: 4, 6: 5, 7: 6, 8: 7, 9: 8, 10: 9, 12: 10, 14: 11, 15: 12}.get(g)
        if st: stamp(a, st)
    X(0, 0); W(0); X(1, 1); W(1)
    a(f"""s_load_dwordx2 s[18:19], s[16:17], 0
    v_and_b32 {v(vFR)}, 7, v0
    v_lshlrev_b32 {v(vFR)}, 2, {v(vFR)}
    v_add_u32 {v(vFR)}, {CNT + O_FREE}, {v(vFR)}
    s_lshl_b32 s49, {s(sW4)}, 2
    s_add_u32 s49, s49, {CNT + O_FULL}
    v_cmp_eq_u32 vcc, 0, v0
    v_mov_b32 {v(vMY)}, 0x7ffffff0
    v_mov_b32 {v(vVAL)}, s49
    v_lshlrev_b32 v6, 3, v0
    v_cndmask_b32 {v(vMY)}, {v(vMY)}, {v(vVAL)}, vcc
    s_lshl_b32 s51, {s(sH)}, 3
    s_add_u32 s51, s51, {s(sQB)}
    s_lshl_b32 s51, s51, 9
    s_add_u32 s50, s51, {F1}""")
    srd(a, sWS, 16, WS_BYTES); srd(a, sC, 12, 512 * 3584)
    a("s_waitcnt lgkmcnt(0)\ns_add_u32 s18, s18, 1\ns_add_u32 s19, s19, 1\ns_barrier")
    landed(0, 1)
    done = 0
    def step(n, lab):
        nonlocal done
        if n >= 4:
            a(f"""s_waitcnt lgkmcnt(0)
            v_cmp_gt_u32 vcc, {n - 3}, {v(vT)}
            s_nop 0
            s_cbranch_vccz {L(f'{lab}fr{n}_ok')}""")
            lds_ge(a, L(f'{lab}fr{n}'), vFR, vT, n - 3, sleep=sl0)
        if hold and n == hold_at:
            a(f"v_and_b32 v14, 3, v0\nv_lshlrev_b32 v14, 2, v14\nv_add_u32 v14, {CNT + O_FREE}, v14\ns_movk_i32 s49, 101")
            lds_ge(a, L('hold'), 14, 15, "s49")
        if n < 8: X(n, n)
        W(n)
        if n >= 13: X(15 - n, n)
        if 3 <= n < ngo - 1: a(f"ds_read_b32 {v(vT)}, {v(vFR)}")
        upto = n - (lookq if n < 8 else lookf)
        while done < upto:
            done += 1; landed(done, {7: 2, 8: 3}.get(done))
    for n in range(2, 8): step(n, 'q')
    a(f"s_cmp_ge_u32 {s(sCG)}, 14\ns_cbranch_scc1 {L('load_idle')}")
    vm_idle = VM(); vm_idle.ops = list(vm.ops); done_idle = done
    def lead_poll(lab, go, *args, fsleep=1, **kw):
        a(f"s_cmp_lg_u32 {s(sW4)}, 0\ns_cbranch_scc1 {L(lab + '_f')}")
        poll(a, L(lab), *args, **kw)
        a(f"v_mov_b32 v14, {go}\nds_write_b32 v15, v14\ns_branch {L(lab + '_fw_ok')}")
        a.label(L(lab + '_f'))
        lds_ge(a, L(lab + '_fw'), 15, 14, go, sleep=fsleep)
    def kvsig(val):
        a(f"v_mov_b32 {v(vVAL)}, {val}\nds_write_b32 {v(vMY)}, {v(vVAL)} offset:{O_KV}")
    def win(w, lab):
        a(f"s_add_u32 m0, {s(sMX)}, {WIN[w]}\ns_add_u32 {s(sT)}, s54, {(4 * w + 2) * 1024}")
        for i in range(4 if w < 7 else 2):
            a(f"buffer_load_dwordx4 v1, {s(sWS,4)}, {s(sT)} offen offset:{i * 1024} sc1 lds")
        if w == 7:
            a(f"s_cmp_lt_u32 {s(sW4)}, 2\ns_cbranch_scc1 {L(lab + 'w7')}")
            a(f"buffer_load_dwordx4 v1, {s(sWS,4)}, {s(sT)} offen offset:2048 sc1 lds")
            a.label(L(lab + 'w7'))
        vm.add(f"w{w}", 4)
    def endgame(lab, busy):
        a(f"""s_lshr_b32 s52, {s(sW4)}, 1
        s_lshl_b32 s53, s52, 21
        s_lshl_b32 s54, {s(sH)}, 16
        s_add_u32 s53, s53, s54
        s_and_b32 s55, {s(sW4)}, 1
        s_lshl_b32 s54, s55, 15
        s_add_u32 s53, s53, s54
        s_add_u32 s53, s53, {KF}
        s_lshl_b32 s54, s52, 10
        s_sub_u32 s54, s53, s54
        s_lshl_b32 s55, {s(sW4)}, 11
        s_cmp_eq_u32 {s(sW4)}, 3
        s_cselect_b32 s55, 5120, s55
        v_mov_b32 v15, {CNT + O_GO}""")
        if busy:
            a("s_waitcnt vmcnt(0)"); signal(ngo)
        lds_ge(a, L(lab + 'go1'), 15, 14, 1, sleep=sl1)
        if busy and "ld" not in dbg: stamp(a, 4)
        lds_ge(a, L(lab + 'fr12'), vFR, vT, 12)
        a(f"""s_setprio {kv_prio}
        s_add_u32 m0, s55, {PRO}
        s_cmp_ge_u32 {s(sW4)}, 2
        buffer_load_dwordx4 v1, {s(sWS,4)}, s53 offen sc1 lds
        s_cbranch_scc1 {L(lab + 'pv')}
        buffer_load_dwordx4 v1, {s(sWS,4)}, s53 offen offset:1024 sc1 lds""")
        a.label(L(lab + 'pv'))
        win(0, lab)
        if busy and ngo < 16:
            W(ngo); X(15 - ngo, ngo)
            a("s_waitcnt vmcnt(8)")
        else:
            a("s_waitcnt vmcnt(0)")
        kvsig(1)
        if busy and "ld" not in dbg: stamp(a, 5)
        if f1sub: lead_poll(lab + 'pq2', 2, 6, "s50", 16, sleep=psleep, lanes=48 if contig else 16)
        if busy and ngo == 14:
            W(15); X(0, 15)
            a("s_waitcnt vmcnt(8)"); signal(15)
        if busy: lds_ge(a, L(lab + 'fr13'), vFR, vT, 13)
        win(1, lab); win(2, lab)
        if busy and ngo < 16:
            a("s_waitcnt vmcnt(8)"); signal(16)
        a("s_waitcnt vmcnt(4)"); kvsig(2)
        if busy: lds_ge(a, L(lab + 'fr14'), vFR, vT, 14)
        win(3, lab); win(4, lab)
        a("s_waitcnt vmcnt(8)"); kvsig(3)
        if late_win:
            a("s_waitcnt vmcnt(0)"); kvsig(5)
            lds_ge(a, L(lab + 'fr16'), vFR, vT, late_win if busy else 16)
        else:
            if busy: lds_ge(a, L(lab + 'fr15'), vFR, vT, 15)
            win(5, lab); win(6, lab)
            a("s_waitcnt vmcnt(8)"); kvsig(5)
            lds_ge(a, L(lab + 'fr16'), vFR, vT, 16)
            win(7, lab)
        if busy and "ld" not in dbg: stamp(a, 6)
    for n in range(8, ngo): step(n, 'f')
    endgame('b', True)
    a(f"s_branch {L('ffn')}")
    a.label(L('load_idle'))
    vm = vm_idle; done = done_idle
    while done < 7:
        done += 1; landed(done)
    endgame('i', False)

    a.label(L('ffn'))
    srd(a, sB, 14, 1792 * 1024); srd(a, sC, 8, 512 * 1024)
    a(f"""v_lshrrev_b32 v7, 2, v0
    v_and_b32 v9, 3, v0
    v_lshlrev_b32 v9, 4, v9
    v_lshl_add_u32 v14, v7, 10, v9
    s_mul_i32 s56, {s(sCG)}, 7
    s_lshl_b32 s57, {s(sW4)}, 1
    s_add_u32 s56, s56, s57
    s_lshl_b32 s58, {s(sRB)}, 6
    s_lshl_b32 s48, s56, 14
    s_add_u32 s48, s48, s58
    s_mul_i32 s49, {s(sRB)}, 112
    s_add_u32 s56, s56, s49
    s_lshl_b32 s56, s56, 10
    s_add_u32 s56, s56, {W2F}
    s_lshl_b32 s49, {s(sCG)}, 15
    s_add_u32 s49, s49, s58
    s_lshl_b32 s58, {s(sRB)}, 4
    s_add_u32 s58, s58, {s(sCG)}
    s_lshl_b32 s58, s58, 11
    s_add_u32 s58, s58, {WOF}
    s_lshl_b32 s57, s57, 10
    s_add_u32 m0, s57, {RLS}
    s_cmp_eq_u32 {s(sW4)}, 3
    buffer_load_dwordx4 v14, {s(sB,4)}, s48 offen lds
    s_cbranch_scc1 {L('rl_w3')}
    s_add_u32 m0, s57, {RLS + 1024}
    s_add_u32 s48, s48, 16384
    buffer_load_dwordx4 v14, {s(sB,4)}, s48 offen lds
    s_add_u32 s59, s56, 1024
    {'' if late_win else 's_waitcnt vmcnt(2)'}
    s_branch {L('rl_w')}""")
    a.label(L('rl_w3'))
    a(f"""s_add_u32 m0, s57, {RLS + 1024}
    s_mov_b32 s59, s58
    buffer_load_dwordx4 v14, {s(sC,4)}, s49 offen lds
    s_mov_b32 m0, {RLS + 8192}
    s_add_u32 s49, s49, 16384
    buffer_load_dwordx4 v14, {s(sC,4)}, s49 offen lds
    {'' if late_win else 's_waitcnt vmcnt(3)'}""")
    a.label(L('rl_w'))
    if late_win:
        win(5, 'l'); win(6, 'l'); win(7, 'l')
    else: kvsig(8)
    a(f"""s_lshr_b32 s43, {s(sW4)}, 1
    s_and_b32 s44, {s(sW4)}, 1""")
    tr_pattern(a, 14, 4, 7, 9)
    RLB = 16
    a(f"s_add_u32 s57, s57, {RLS}\nv_add_u32 v14, s57, v14\nv_mov_b32 v2, {CNT}\ns_waitcnt vmcnt({10 if late_win else 0})")
    for n in range(3):
        a(f"ds_read_b64_tr_b16 {v(RLB + 4*n, 2)}, v14 offset:{n * 1024}\nds_read_b64_tr_b16 {v(RLB + 4*n + 2, 2)}, v14 offset:{n * 1024 + 512}")
    a(f"""s_waitcnt lgkmcnt(0)
    buffer_store_dwordx4 {v(RLB, 4)}, v1, {s(sWS,4)}, s56 offen sc1
    buffer_store_dwordx4 {v(RLB + 4, 4)}, v1, {s(sWS,4)}, s59 offen sc1
    s_cmp_lg_u32 {s(sW4)}, 3
    s_cbranch_scc1 {L('rl_s3')}
    buffer_store_dwordx4 {v(RLB + 8, 4)}, v1, {s(sWS,4)}, s58 offen offset:1024 sc1""")
    a.label(L('rl_s3'))
    if late_win:
        a("s_waitcnt vmcnt(2)"); kvsig(8)
    a(f"""v_min_u32 v7, 13, v0
    v_cmp_gt_u32 vcc, 16, v0
    s_add_u32 s50, s51, {F2}
    s_nop 0
    v_cndmask_b32 v6, v0, v7, vcc
    v_lshlrev_b32 v6, 3, v6
    s_mul_i32 s47, {s(sW4)}, 28
    s_lshl_b32 s52, {s(sQB)}, 1
    s_add_u32 s52, s52, s43
    s_xor_b32 s53, s52, 1
    s_lshl_b32 s54, {s(sH)}, 1
    s_add_u32 s54, s54, s44
    s_xor_b32 s55, s54, 1""")
    for i, base in enumerate((W2F, W2F, HF, HF)):
        a(f"""s_mul_i32 {s(52 + i)}, {s(52 + i)}, 112
        s_add_u32 {s(52 + i)}, {s(52 + i)}, s47
        s_lshl_b32 {s(52 + i)}, {s(52 + i)}, 10
        s_add_u32 {s(52 + i)}, {s(52 + i)}, {base}""")
    ACC = 8; RING = 72
    a("s_waitcnt vmcnt(0)")
    f2_arrive(a, L('f2f'), 2, 8)
    a(f"""v_mov_b32 v2, {CNT + O_FCNT}
    v_mov_b32 v3, 1""")
    lead_poll('pf2', 3, 6, "s50", 16, sleep=sl2, lanes=48, fsleep=sl2)
    a(f"s_setprio {ffn_prio}")
    stamp(a, 7)
    def floads(u):
        return [f"buffer_load_dwordx4 {v(RING + 16*u + 4*i, 4)}, v1, {s(sWS,4)}, {s(52 + i)} offen offset:{u * 1024} sc1" for i in range(4)]
    def fm(u, j, zero=False):
        d = v(ACC + 16*j, 16)
        return f"{mm} {d}, {v(RING + 16*u + 4*(j >> 1), 4)}, {v(RING + 16*u + 8 + 4*(j & 1), 4)}, {'0' if zero else d}"
    for u in range(4):
        for x in floads(u): a(x)
    def fit(first, last):
        if not last:
            for i in range(4): a(f"s_add_u32 {s(52 + i)}, {s(52 + i)}, 4096")
        for u in range(4):
            a(f"s_waitcnt vmcnt({12 - 4*u if last else 12})")
            for j in range(4): a(fm(u, j, first and u == 0))
            if not last:
                for x in floads(u): a(x)
    fit(True, False)
    a("s_mov_b32 s47, 5")
    a.label(L('floop'))
    fit(False, False)
    a(f"s_sub_u32 s47, s47, 1\ns_cmp_lg_u32 s47, 0\ns_cbranch_scc1 {L('floop')}")
    fit(False, True)
    stamp(a, 8)
    a(f"s_setprio {red_prio}")
    RR = 92
    a(f"""s_lshl_b32 s51, {s(sH)}, 1
    s_add_u32 s51, s51, s44
    s_lshl_b32 s47, s51, 7
    s_add_u32 s47, s47, {RS}
    v_and_b32 v7, 31, v0
    v_lshlrev_b32 v6, 2, v7
    buffer_load_dword {v(RR)}, v6, {s(sWS,4)}, s47 offen sc1""")
    a(f"""v_and_b32 v5, 7, v0
    v_lshlrev_b32 v5, 2, v5
    v_add_u32 v5, {CNT + O_FREE}, v5""")
    lds_ge(a, L('xfree'), 5, RR + 1, "s48", pre_s="s_movk_i32 s48, 200", sleep=8)
    for ph in (1, 2, 3):
        a(f"""s_xor_b32 s47, {s(sW4)}, {ph}
        s_mul_i32 s47, s47, 12288
        s_add_u32 s47, s47, 32768
        v_add_u32 v4, s47, v1""")
        for i in range(4): a(f"ds_write_b128 v4, {v(ACC + 16*ph + 4*i, 4)} offset:{(ph - 1) * 4096 + 1024 * i}")
    lds_signal(a, 2, 3)
    a(f"s_mul_i32 s47, {s(sW4)}, 12288\ns_add_u32 s47, s47, 32768\nv_add_u32 v4, s47, v1")
    lds_wait(a, L('fw1'), 2, 5, 48, 4)
    for i in range(12): a(f"ds_read_b128 {v(ACC + 16 + 4*i, 4)}, v4 offset:{1024 * i}")
    for ph in range(3):
        a(f"s_waitcnt lgkmcnt({8 - 4*ph})")
        if ph == 2: lds_signal(a, 2, 3)
        for k in range(16): a(f"v_add_f32 {v(ACC + k)}, {v(ACC + k)}, {v(ACC + 16 + 16*ph + k)}")
    stamp(a, 9)
    G, T, XB, PACC, FR = ACC, 24, 40, 48, 64
    srd(a, sB, 4, 2 * MB); srd(a, sA, 10, 2 * MB)
    a(f"""s_lshl_b32 s51, s51, 15
    s_lshl_b32 s47, {s(sQB)}, 1
    s_add_u32 s47, s47, s43
    s_lshl_b32 s47, s47, 6
    s_add_u32 s51, s51, s47
    s_add_u32 s52, s51, 16384
    v_lshrrev_b32 v4, 2, v0
    v_and_b32 v5, 3, v0
    v_lshlrev_b32 v5, 4, v5
    v_lshl_add_u32 v6, v4, 10, v5
    buffer_load_dwordx4 {v(XB,4)}, v6, {s(sB,4)}, s51 offen
    buffer_load_dwordx4 {v(XB+4,4)}, v6, {s(sB,4)}, s52 offen
    s_mul_i32 s47, {s(sW4)}, 2560
    s_add_u32 s47, s47, {XR}
    v_mul_u32_u24 v2, 80, v7
    v_lshrrev_b32 v3, 5, v0
    v_lshl_add_u32 v2, v3, 3, v2
    v_add_u32 v2, s47, v2
    v_mul_u32_u24 v4, 80, v4
    v_add3_u32 v4, v4, v5, s47
    s_mul_i32 s47, s44, 98304
    v_add_u32 {v(RR+2)}, s47, v1
    s_lshl_b32 s47, s43, 15
    s_add_u32 s47, s47, 32768
    v_add_u32 {v(RR+3)}, s47, v1
    s_lshl_b32 s53, {s(sQB)}, 16
    s_lshl_b32 s54, {s(sW4)}, 14
    s_add_u32 s53, s53, s54
    s_add_u32 s53, s53, {WOF}
    s_add_u32 s54, s54, 32768
    v_lshlrev_b32 v3, 3, v0
    s_lshl_b32 s50, {s(sH)}, 3
    s_add_u32 s50, s50, {s(sQB)}
    s_lshl_b32 s50, s50, 2
    s_add_u32 s50, s50, {s(sW4)}
    s_lshl_b32 s50, s50, 7
    s_add_u32 s50, s50, {F3}
    s_lshl_b32 s55, {s(sH)}, 16
    s_lshl_b32 s47, {s(sW4)}, 10
    s_add_u32 s55, s55, s47
    s_add_u32 s55, s55, {OF}
    v_mov_b32 v5, {CNT + O_FCNT}""")
    lds_ge(a, L('wofree'), 5, RR + 1, 8)
    for g in range(4):
        a(f"s_add_u32 m0, s54, {g * 4096}\ns_add_u32 s48, s53, {g * 4096}")
        for i in range(4):
            a(f"buffer_load_dwordx4 v1, {s(sWS,4)}, s48 offen offset:{i * 1024} sc1 lds")
    a(f"s_setprio {gap_prio}\nv_mov_b32 {v(RR+1)}, 1\ns_waitcnt vmcnt(0)")
    lds_signal(a, 5, RR + 1)
    stamp(a, 10)
    def silu():
        U = FR
        for i in range(16): a(f"v_mul_f32 {v(G+i)}, {v(G+i)}, {v(RR)}")
        for i in range(16): a(f"v_mul_f32 {v(U+i)}, {fbits(-LOG2E)}, {v(G+i)}")
        for i in range(16): a(f"v_exp_f32 {v(U+i)}, {v(U+i)}")
        for i in range(16): a(f"v_add_f32 {v(U+i)}, 1.0, {v(U+i)}")
        for i in range(16): a(f"v_rcp_f32 {v(U+i)}, {v(U+i)}")
        for i in range(16): a(f"v_mul_f32 {v(G+i)}, {v(G+i)}, {v(U+i)}")
    if not late_silu: silu()
    for i in range(8):
        a(f"v_lshlrev_b32 {v(T+2*i)}, 16, {v(XB+i)}\nv_and_b32 {v(T+2*i+1)}, 0xffff0000, {v(XB+i)}")
    WF = 96
    lds_ge(a, L('wordy'), 5, RR + 1, 12)
    for k in range(16): a(f"ds_read_b128 {v(WF + 4*k, 4)}, {v(RR+3)} offset:{k * 1024}")
    if p3bar: a("s_barrier")
    a("s_setprio 3")
    poll(a, L('pf3'), 3, "s50", 88, lanes=16, sleep=p3sleep, fill=silu if late_silu else None)
    stamp(a, 11)
    for i in range(16):
        off = (i & 1) * 32768 + (i >> 1) * 4096
        a(f"""s_add_u32 m0, s47, {(i & 1) * 98304 + (i >> 1) * 4096}
        s_add_u32 s48, s55, {off}
        buffer_load_dwordx4 v1, {s(sWS,4)}, s48 offen sc1 lds""")
    ND = 6
    orr = lambda k: f"ds_read_b128 {v(FR + 4*(k % ND), 4)}, {v(RR+2)} offset:{k * 1024}"
    wrr = lambda k: f"ds_read_b128 {v(WF + 4*(k % 16), 4)}, {v(RR+3)} offset:{k * 1024}"
    q = []; nxt = 0
    a("s_waitcnt vmcnt(12) lgkmcnt(0)\ns_barrier")
    avail = 8
    def top_up(k):
        nonlocal nxt
        while nxt < min(avail, k + ND): a(orr(nxt)); q.append(("o", nxt)); nxt += 1
    top_up(0)
    for k in range(32):
        need = max(i for i, x in enumerate(q) if x == ("o", k) or x == ("w", k))
        a(f"s_waitcnt lgkmcnt({min(15, len(q) - 1 - need)})")
        a(f"{mm} {v(PACC,16)}, {v(WF + 4*(k % 16), 4)}, {v(FR + 4*(k % ND), 4)}, {'0' if k == 0 else v(PACC,16)}")
        if k % 8 == 4 and k < 24:
            a(f"s_waitcnt vmcnt({8 - 4 * (k // 8)})\ns_barrier"); avail += 8
        top_up(k + 1)
        if k < 16: a(wrr(k + 16)); q.append(("w", k + 16))
    a(f"""s_or_b32 s48, s2, {s(sW4)}
    s_cmp_lg_u32 s48, 0
    s_cbranch_scc1 {L('now0')}""")
    flag_store(a, "0", FR)
    a.label(L('now0'))
    a("s_nop 8")
    stamp(a, 12)
    for i in range(8):
        r = v(PACC+2*i, 2)
        a(f"v_pk_mul_f32 {r}, {r}, {v(G+2*i, 2)}")
    for i in range(8): a(f"v_cvt_pk_bf16_f32 {v(XB+i)}, {v(PACC+2*i)}, {v(PACC+2*i+1)}")
    for i in range(4): a(f"ds_write_b64 v2, {v(XB+2*i, 2)} offset:{16*i}")
    a(f"""ds_read_b128 {v(FR+8,4)}, v4
    ds_read_b128 {v(FR+12,4)}, v4 offset:1280
    s_waitcnt lgkmcnt(0)""")
    for i in range(8):
        a(f"v_lshlrev_b32 {v(G+2*i)}, 16, {v(FR+8+i)}\nv_and_b32 {v(G+2*i+1)}, 0xffff0000, {v(FR+8+i)}")
    for i in range(8):
        a(f"v_pk_add_f32 {v(G+2*i,2)}, {v(G+2*i,2)}, {v(T+2*i,2)}")
    for i in range(8): a(f"v_cvt_pk_bf16_f32 {v(XB+i)}, {v(G+2*i)}, {v(G+2*i+1)}")
    a(f"""buffer_store_dwordx4 {v(XB,4)}, v6, {s(sA,4)}, s51 offen {osc}
    buffer_store_dwordx4 {v(XB+4,4)}, v6, {s(sA,4)}, s52 offen {osc}""")
    if asmlib.TRACE: a("s_waitcnt vmcnt(0)")
    stamp_end(a, 0, sWV)
    a("s_endpgm")

    a.label(L('cons'))
    if cons_prio: a(f"s_setprio {cons_prio}")
    AX, AW, SMA, SMI, SQ, vDUM, vMINE, CSA, CSB, BUF, AC = 12, 16, 20, 24, 25, 26, 27, 28, 32, 36, 100
    vK, vV, vST, vCNT = 164, 165, 166, 167
    OA, OB, SA, SB, PA, ZQ, vIX, QA, QB_, KK, VV = 36, 52, 100, 116, 132, 68, 72, 76, 80, 140, 148
    sRO, sG, sDX, sDW, sTT = 43, 44, 45, 46, 47
    a(f"""v_mov_b32 v8, 0
    v_and_b32 v5, 31, v0
    v_lshlrev_b32 v5, 2, v5
    v_add_u32 v5, {CNT}, v5
    ds_write_b32 v5, v8
    v_and_b32 {v(vCNT)}, 3, v0
    v_lshlrev_b32 {v(vCNT)}, 2, {v(vCNT)}
    v_add_u32 {v(vCNT)}, {CNT + O_FULL}, {v(vCNT)}
    s_lshl_b32 s48, {s(sWV)}, 2
    s_add_u32 s48, s48, {CNT + O_FREE - 16}
    v_cmp_eq_u32 vcc, 0, v0
    v_mov_b32 {v(vMINE)}, 0x7ffffff0
    v_mov_b32 v5, s48
    v_and_b32 v2, 31, v0
    v_cndmask_b32 {v(vMINE)}, {v(vMINE)}, v5, vcc
    v_lshrrev_b32 v3, 5, v0
    v_bfe_u32 v4, v0, 1, 3
    v_xor_b32 v4, v4, v3
    v_lshlrev_b32 v4, 4, v4
    v_lshl_add_u32 v4, v2, 7, v4
    s_lshr_b32 {s(sRO)}, {s(sWV)}, 3""")
    tr_pattern(a, 11, 8, 6, 7)
    a(f"""v_lshrrev_b32 v6, 2, v0
    v_xor_b32 v6, v6, v0
    v_and_b32 v6, 8, v6
    v_and_or_b32 v6, v0, 6, v6
    v_mov_b32 v7, 0x3f803f80
    v_mov_b32 v8, 0
    v_cmp_eq_u32 vcc, 0, v6
    v_cmp_eq_u32 s[50:51], 4, v6
    v_and_b32 v9, 1, v0
    v_cndmask_b32 {v(SMA)}, v8, v7, vcc
    v_cndmask_b32 {v(SMA+1)}, v8, v7, vcc
    v_cndmask_b32 {v(SMA+2)}, v8, v7, s[50:51]
    v_cndmask_b32 {v(SMA+3)}, v8, v7, s[50:51]
    v_mul_u32_u24 v9, 0xaaaa, v9
    v_add_u32 {v(SMI)}, 0x4444, v9""")
    a(f"""s_lshl_b32 s51, {s(sQB)}, 3
    s_lshl_b32 s50, {s(sW4)}, 1
    s_add_u32 s51, s51, s50
    s_add_u32 s51, s51, {s(sRO)}
    s_lshl_b32 s50, {s(sH)}, 6
    s_add_u32 s54, s50, s51
    s_xor_b32 s55, s54, 1
    s_lshl_b32 s54, s54, 10
    s_lshl_b32 s55, s55, 10
    s_add_u32 s54, s54, {QF}
    s_add_u32 s55, s55, {QF}""")
    a(f"""v_and_b32 v5, 11, v0
    v_cmp_eq_u32 vcc, 0, v5
    s_lshl_b32 s48, {s(sW4)}, 10
    s_add_u32 s48, s48, {ONES}
    v_cndmask_b32 {v(BUF)}, v8, v7, vcc
    v_add_u32 v5, s48, v1
    v_min_u32 v5, {LDS_BYTES - 256}, v5
    v_and_b32 v6, 0xf0, v1
    v_or_b32 v5, v5, v6
    v_mov_b32 {v(BUF+1)}, {v(BUF)}
    v_mov_b32 {v(BUF+2)}, {v(BUF)}
    v_mov_b32 {v(BUF+3)}, {v(BUF)}
    ds_write_b128 v5, {v(BUF,4)}
    s_lshl_b32 s48, {s(sRO)}, 12
    s_add_u32 s48, s48, {WIN[0]}
    v_add_u32 {v(vK)}, s48, v1
    v_and_b32 v5, 15, v0
    v_lshlrev_b32 v5, 4, v5
    v_lshl_add_u32 v7, v3, 9, v5
    s_add_u32 s48, s48, 8192
    v_add_u32 v7, s48, v7
    v_add_u32 v5, {ONES}, v5
    v_and_b32 v6, 16, v0
    v_cmp_eq_u32 vcc, 0, v6
    v_mov_b32 v6, 1
    s_nop 0
    v_cndmask_b32 {v(vV)}, v5, v7, vcc
    v_cndmask_b32 {v(vST)}, v8, v6, vcc""")
    for i in [SQ] + list(range(CSA, BUF)): a(f"v_mov_b32 {v(i)}, 0")
    for i in range(64): a(f"v_mov_b32 {v(AC + i)}, 0")
    a(f"""s_lshl_b32 {s(sTT)}, {s(sRB)}, 2
    s_add_u32 {s(sTT)}, {s(sTT)}, {s(sW4)}
    s_waitcnt lgkmcnt(0)
    s_load_dwordx2 s[18:19], s[16:17], 0""")
    srd(a, sWS, 16, WS_BYTES)
    if cpf:
        a(f"""s_getpc_b64 s[48:49]""")
        a.label(L('pc'))
        a(f"""s_sub_u32 s48, s48, {L('pc')}-{L('start')}
        s_subb_u32 s49, s49, 0
        s_lshr_b32 s50, s2, 3
        s_and_b32 s50, s50, 7
        s_mul_i32 s50, s50, CODE_SHARE
        v_lshlrev_b32 v5, 7, v0
        v_add_u32 v5, s50, v5
        v_min_u32 v5, CODE_LAST, v5
        s_cmp_lg_u32 {s(sWV)}, 11
        s_cbranch_scc1 {L('nocpf')}
        s_mov_b64 exec, CODE_MASK
        global_load_dword {v(vDUM)}, v5, s[48:49]
        s_mov_b64 exec, -1""")
        a.label(L('nocpf'))
    vPF = 10
    def pf_issue():
        a(f"""s_cmp_lt_u32 s57, 8
        s_cselect_b32 s48, s58, s3
        buffer_load_dword {v(vDUM)}, {v(vPF)}, {s(sA,4)}, s48 offen
        s_add_u32 s57, s57, 1
        s_add_u32 s58, s58, s59""")
    if pf:
        a(f"""s_cmp_eq_u32 {s(sRO)}, 0
        s_cbranch_scc1 {L('pf_done')}
        s_mov_b32 s3, 0x7ff00000
        s_and_b32 s50, {s(sRB)}, 7
        s_lshl_b32 s50, s50, 3
        v_and_b32 v6, 7, v0
        v_lshrrev_b32 v7, 3, v0
        s_cmp_eq_u32 {s(sW4)}, 1
        s_cbranch_scc1 {L('pf_wq')}
        s_cmp_ge_u32 {s(sW4)}, 2
        s_cbranch_scc1 {L('pf_w1')}""")
        srd(a, sA, 4, 2 * MB)
        a(f"""s_and_b32 s49, {s(sCG)}, 3
        s_lshl_b32 s49, s49, 5
        s_lshl_b32 s50, {s(sRB)}, 7
        s_add_u32 s49, s49, s50
        s_lshl_b32 s58, s49, 10
        s_add_u32 s58, s58, 256
        s_mov_b32 s59, 128
        s_mov_b32 s57, 2
        v_lshlrev_b32 {v(vPF)}, 10, v2
        v_lshl_add_u32 {v(vPF)}, v3, {6 if pf == 64 else 30}, {v(vPF)}
        s_branch {L('pf_go')}""")
        a.label(L('pf_wq'))
        srd(a, sA, 6, 512 * 3072)
        a(f"""s_add_u32 s50, s50, 128
        s_mul_i32 s58, s50, 3072
        s_lshl_b32 s49, {s(sCG)}, 6
        s_add_u32 s58, s58, s49
        s_mov_b32 s59, {64 * 3072}
        s_mov_b32 s57, 2
        v_cmp_gt_u32 vcc, 3, v7
        v_lshlrev_b32 v7, 10, v7
        s_movk_i32 s49, 3072
        v_mad_u32_u24 v7, v6, s49, v7
        v_mov_b32 v6, 0x40000000
        v_cndmask_b32 {v(vPF)}, v6, v7, vcc
        s_branch {L('pf_go')}""")
        a.label(L('pf_w1'))
        srd(a, sA, 12, 512 * 3584)
        a(f"""s_add_u32 s50, s50, {(7 + pfw1) * 64}
        s_mul_i32 s58, s50, 3584
        s_lshl_b32 s49, {s(sCG)}, 8
        s_add_u32 s58, s58, s49
        s_mov_b32 s59, {-64 * 3584}
        s_cmp_eq_u32 {s(sW4)}, 2
        s_cselect_b32 s57, {-pfw1}, 8
        v_cmp_gt_u32 vcc, 4, v7
        v_lshlrev_b32 v7, 6, v7
        s_movk_i32 s49, 3584
        v_mad_u32_u24 v7, v6, s49, v7
        v_mov_b32 v6, 0x40000000
        v_cndmask_b32 {v(vPF)}, v6, v7, vcc""")
        a.label(L('pf_go'))
        for _ in range(pfd): pf_issue()
        a.label(L('pf_done'))
    def addrs(xoff, woff, rot):
        a(f"v_add_u32 v5, {xoff}, v4")
        for p in range(4):
            a(f"""s_add_u32 s48, {rot}, {p}
            s_and_b32 s48, s48, 3
            s_lshl_b32 s50, s48, 5
            v_xor_b32 {v(AX + p)}, s50, v5
            s_lshl_b32 s48, s48, 12
            s_add_u32 s48, s48, {woff}
            v_add_u32 {v(AW + p)}, s48, v11""")
    a(f"s_lshl_b32 s52, {s(sW4)}, 12\ns_mov_b32 s53, {WB}")
    addrs("s52", "s53", s(sW4))
    a(f"""s_mov_b32 s52, 16384
    s_mov_b32 s53, -16384
    s_mov_b32 {s(sG)}, 0
    s_waitcnt lgkmcnt(0)
    s_add_u32 s18, s18, 1
    s_add_u32 s19, s19, 1
    s_cmp_lg_u32 {s(sRO)}, 0""")
    stamp(a, 1)
    a(f"s_barrier\ns_cbranch_scc1 {L('stats0')}")

    def sm(b, acc): return f"v_smfmac_f32_16x16x64_bf16 {v(acc,4)}, {v(SMA,4)}, {v(b,8)}, {v(SMI)}"
    def deltas(ffn):
        if not ffn:
            a(f"s_cmp_eq_u32 {s(sG)}, 4\ns_cselect_b32 {s(sDX)}, -65536, s52")
        else:
            a(f"s_cmp_eq_u32 {s(sG)}, 10\ns_cselect_b32 {s(sDX)}, 65536, s53")
        a(f"""s_and_b32 s48, {s(sG)}, 3
        s_cmp_eq_u32 s48, 3
        s_cselect_b32 {s(sDW)}, -49152, s52
        s_add_u32 {s(sG)}, {s(sG)}, 1""")
    adv = [f"v_add_u32 {v(r + p)}, {s(d)}, {v(r + p)}" for p in range(4) for r, d in ((AX, sDX), (AW, sDW))]
    def emit(*items):
        for it in items:
            for x in ([it] if isinstance(it, str) else it): a(x)
    def cs_pack(src, t):
        a(f"""v_cvt_pk_bf16_f32 {v(t)}, {v(src)}, {v(src)}
        v_and_b32 {v(t)}, 0xffff0000, {v(t)}
        v_sub_f32 {v(t)}, {v(src)}, {v(t)}
        v_cvt_pk_bf16_f32 {v(t)}, {v(src)}, {v(t)}""")
    def freesig(val):
        return [f"v_mov_b32 v9, {val}", f"ds_write_b32 {v(vMINE)}, v9"]
    def slowwait(lab, back):
        a.label(L(lab))
        lds_ge(a, L(lab + 'w'), vCNT, 8, "s49")
        a(f"s_branch {L(back)}")
    flagrd = f"ds_read_b32 v8, {v(vCNT)}"
    def attn_init():
        for i in range(4): a(f"v_mov_b32 {v(ZQ + i)}, 0")
        a(f"v_mov_b32 {v(vIX)}, 0xdddd\ns_nop 0")
        a(f"{mm} {v(OA,16)}, {v(ZQ,4)}, {v(ZQ,4)}, 0\n{mm} {v(OB,16)}, {v(ZQ,4)}, {v(ZQ,4)}, 0")
    def qload():
        a(f"""buffer_load_dwordx4 {v(QA,4)}, v1, {s(sWS,4)}, s54 offen sc1
        buffer_load_dwordx4 {v(QB_,4)}, v1, {s(sWS,4)}, s55 offen sc1""")

    def RA(p):
        b = BUF + 16 * p
        r = [f"ds_read_b128 {v(b + 12, 4)}, {v(AX + p)}"]
        for t in range(3):
            r += [f"ds_read_b64_tr_b16 {v(b + 4*t, 2)}, {v(AW + p)} offset:{t * 1024}",
                  f"ds_read_b64_tr_b16 {v(b + 4*t + 2, 2)}, {v(AW + p)} offset:{t * 1024 + 256}"]
        return r
    lds_ge(a, L('a_first'), vCNT, 8, 1)
    stamp(a, 2)
    emit(RA(0), RA(1), RA(2))
    if contig: a(f"""s_cmp_eq_u32 {s(sCG)}, 10
    s_cbranch_scc1 {L('qkv1')}
    s_cmp_gt_u32 {s(sCG)}, 10
    s_cbranch_scc1 {L('qkv2')}""")
    TS = 131072 if contig else 2 * MB
    for vn, isv in ((("0", (0, 0, 0)), ("1", (0, 0, 1)), ("2", (1, 1, 1))) if contig else (("2", (0, 0, 1)),)):
        def MA(p):
            b = BUF + 16 * p; x = v(b + 12, 4)
            return [f"{mm} {v(AC+16*t,16)}, {x}, {v(b+4*t,4)}, {v(AC+16*t,16)}" if isv[t] else
                    f"{mm} {v(AC+16*t,16)}, {v(b+4*t,4)}, {x}, {v(AC+16*t,16)}" for t in range(3)]
        a.label(L('qkv' + vn))
        m0_, m1_, m2_, m3_ = MA(0), MA(1), MA(2), MA(3)
        emit("s_waitcnt lgkmcnt(14)", m0_[0], RA(3)[:3], m0_[1], RA(3)[3:], flagrd, m0_[2], sm(BUF, CSA), sm(BUF + 8, CSB),
             f"s_cmp_eq_u32 {s(sG)}, 7", "s_waitcnt lgkmcnt(15)", m1_[0], f"s_cbranch_scc1 {L('qkv_x' + vn)}")
        deltas(False)
        emit(f"s_add_u32 s49, {s(sG)}, 1", f"v_mov_b32 v9, {s(sG)}", adv[:4], m1_[1], adv[4:], "s_waitcnt lgkmcnt(0)",
             f"ds_write_b32 {v(vMINE)}, v9", "v_cmp_gt_u32 vcc, s49, v8", m1_[2], f"s_cbranch_vccnz {L('qkv_s' + vn)}")
        a.label(L('qkv_b' + vn))
        emit(m2_[0], RA(0)[:3], m2_[1], RA(0)[3:], m2_[2], RA(1)[:3], m3_[0], RA(1)[3:], m3_[1], RA(2)[:3], m3_[2], RA(2)[3:],
             f"s_branch {L('qkv' + vn)}")
        slowwait('qkv_s' + vn, 'qkv_b' + vn)
        a.label(L('qkv_x' + vn))
        emit(m1_[1:], f"""s_lshl_b32 s48, {s(sW4)}, 2
        s_add_u32 s48, s48, {CSX}
        v_add_u32 v5, s48, v1
        v_add_f32 v4, {v(CSA)}, {v(CSA+1)}
        v_add_f32 v7, {v(CSB)}, {v(CSB+1)}
        s_waitcnt lgkmcnt(8)""", m2_)
        cs_pack(4, 6); cs_pack(7, 10)
        emit("v_mov_b32 v9, 100", "s_waitcnt lgkmcnt(0)", m3_[0], "ds_write_b32 v5, v6", "ds_write_b32 v5, v10 offset:1024",
             f"ds_write_b32 {v(vMINE)}, v9", m3_[1])
        M4, CF, R16, PK, RQ = 148, 36, 48, 64, 153
        a(f"""s_setprio {epi_prio}
        s_lshl_b32 s48, {s(sW4)}, 8
        s_add_u32 s48, s48, {STX}
        v_lshl_add_u32 v7, v2, 3, s48
        v_lshl_add_u32 v6, v3, 5, s48
        v_lshlrev_b32 v5, 4, v2
        v_add_u32 v5, {CSX}, v5
        v_and_b32 v4, 7, v0
        v_lshlrev_b32 v4, 2, v4
        v_add_u32 v4, {CNT + O_FREE}, v4""")
        emit(m3_[2])
        stamp(a, 3)
        lds_ge(a, L('e1' + vn), 4, 8, 8)
        a("v_cmp_eq_u32 vcc, 0, v3\nv_mov_b32 v10, 0")
        a("ds_read_b64 v[8:9], v7")
        for t in range(3): a(f"ds_read_b128 {v(CF + 4*t, 4)}, v5 offset:{512 * t}")
        nr = 0
        if any(isv):
            nr = 8
            for i in range(4):
                for k in range(2):
                    a(f"ds_read2_b32 {v(R16 + 4*i + 2*k, 2)}, v6 offset0:{16*i + 4*k + 1} offset1:{16*i + 4*k + 3}")
        a(f"""s_mul_i32 s50, {s(sCG)}, {3 if contig else 1}
        s_lshl_b32 s48, s50, 7
        s_add_u32 s48, s48, {s(sTT)}
        s_lshl_b32 s48, s48, 10
        s_add_u32 s48, s48, {QF}
        s_waitcnt lgkmcnt({3 + nr})""")
        for i in range(4): a(f"v_cndmask_b32 {v(M4+i)}, v10, v8, vcc")
        a(f"s_nop 0\ns_waitcnt lgkmcnt({nr})")
        for t in range(3):
            d = v(AC + 16*t, 16)
            a(f"{mm} {d}, {v(M4,4)}, {v(CF+4*t,4)}, {d}" if isv[t] else f"{mm} {d}, {v(CF+4*t,4)}, {v(M4,4)}, {d}")
        for t in range(3):
            if not isv[t]:
                a(f"""s_cmp_lt_u32 s50, {(16 - t) if contig else (16 if t == 0 else 0)}
                s_cselect_b32 s49, {fbits(0.25 * LOG2E)}, 1.0
                v_mul_f32 {v(RQ + t)}, s49, v9""")
        if any(isv):
            a(f"""v_bfe_u32 v8, v0, 4, 1
            v_lshlrev_b32 v8, 16, v8
            v_lshl_add_u32 v8, v3, 9, v8
            v_and_b32 v10, 15, v0
            v_lshl_add_u32 v8, v10, 4, v8
            v_lshrrev_b32 v10, 1, v0
            v_xor_b32 v10, v10, v0
            v_and_b32 v10, 4, v10
            v_mul_u32_u24 v10, 3, v10
            v_xor_b32 v10, v10, v0
            v_lshlrev_b32 v4, 4, v10""")
        if not any(isv) or not contig:
            a(f"""s_cmp_lg_u32 {s(sCG)}, 0
            s_cbranch_scc1 {L('nors')}
            s_lshl_b32 s49, {s(sTT)}, 7
            s_add_u32 s49, s49, {RS}
            v_lshlrev_b32 v10, 2, v2
            buffer_store_dword v9, v10, {s(sWS,4)}, s49 offen sc1""")
            a.label(L('nors'))
        a(("s_nop 3\n" if all(isv) else "") + "s_waitcnt lgkmcnt(0)")
        for t in range(3):
            pk = PK + 8 * t
            for i in range(16):
                a(f"v_mul_f32 {v(AC + 16*t + i)}, {v(AC + 16*t + i)}, {v(R16 + i if isv[t] else RQ + t)}")
            for i in range(8): a(f"v_cvt_pk_bf16_f32 {v(pk + i)}, {v(AC + 16*t + 2*i)}, {v(AC + 16*t + 2*i + 1)}")
            for sx in range(2):
                if not isv[t]:
                    a(f"""s_add_u32 s49, s48, {t * TS + sx * 65536}
                    buffer_store_dwordx4 {v(pk + 4*sx, 4)}, {'v4' if t == 1 else 'v1'}, {s(sWS,4)}, s49 offen sc1""")
                else:
                    if sx == 0: a(f"s_add_u32 s49, s48, {t * TS}")
                    a(f"buffer_store_dwordx4 {v(pk + 4*sx, 4)}, v8, {s(sWS,4)}, s49 offen offset:{256 * sx} sc1")
        if vn != "2": a(f"s_branch {L('qkv_done')}")
    a.label(L('qkv_done'))
    stamp(a, 4)
    if hold == 1: emit(freesig(101))
    attn_init()
    a("s_waitcnt vmcnt(0)")
    def f1_addr(d, t):
        if contig:
            a(f"""s_mul_i32 s48, {s(sCG)}, 3
            v_lshrrev_b32 {v(t)}, 4, v0
            v_add_u32 {v(t)}, s48, {v(t)}
            v_lshrrev_b32 {v(d)}, 4, {v(t)}
            v_lshlrev_b32 {v(d)}, 7, {v(d)}
            v_and_b32 {v(t)}, 15, {v(t)}
            v_lshl_add_u32 {v(d)}, {v(t)}, 13, {v(d)}
            v_and_b32 {v(t)}, 15, v0
            v_lshl_add_u32 {v(d)}, {v(t)}, 9, {v(d)}
            s_lshl_b32 s48, {s(sRB)}, 3
            v_add_u32 {v(d)}, s48, {v(d)}""")
        else:
            a(f"""s_lshl_b32 s48, {s(sCG)}, 13
            s_lshl_b32 s49, {s(sRB)}, 3
            s_add_u32 s48, s48, s49
            v_lshl_add_u32 {v(d)}, v0, 9, s48""")
    arrive(a, L('f1a'), vCNT, 4, O_F1C, 3, f1_addr, 48 if contig else 16, F1)
    if hold == 2: emit(freesig(101))
    a(f"s_setprio {cons_prio}")
    stamp(a, 5)
    f2_arrive(a, L('f2a'), vCNT, 4)
    a(f"""s_mov_b32 s56, 0
    s_cmp_lg_u32 {s(sW4)}, 0
    s_cbranch_scc1 {L('attnq')}
    s_lshl_b32 s50, {s(sH)}, 3
    s_add_u32 s50, s50, {s(sQB)}
    s_lshl_b32 s50, s50, 9
    s_add_u32 s50, s50, {F1}
    v_lshlrev_b32 v6, 3, v0""")
    if f1sub:
        a(f"""s_lshl_b32 s48, {s(sQB)}, 1
        s_lshl_b32 s52, 3, s48
        s_or_b32 s52, s52, {0x03030000 if contig else 0x0303}
        s_mov_b32 s53, {0x0303 if contig else 0}""")
    poll(a, L('pq'), 6, "s50", 4, sleep=psleep, lanes=48 if contig else 16, mask="s[52:53]" if f1sub else None)
    a(f"v_mov_b32 v4, 1\nv_mov_b32 v5, {CNT + O_GO}\nds_write_b32 v5, v4\ns_branch {L('attnq')}")

    a.label(L('stats0'))
    if s_prio: a(f"s_setprio {s_prio}")
    if spf:
        a(f"""s_and_b32 s48, {s(sCG)}, 3
        s_lshl_b32 s48, s48, 2
        s_add_u32 s48, s48, {s(sW4)}
        s_lshl_b32 s48, s48, 3
        s_lshl_b32 s49, {s(sRB)}, 7
        s_add_u32 s48, s48, s49
        s_lshl_b32 s48, s48, 10
        s_add_u32 s56, s4, s48
        s_addc_u32 s57, s5, 0
        s_and_b32 s48, {s(sRB)}, 7
        s_lshl_b32 s48, s48, 2
        s_add_u32 s48, s48, {s(sW4)}
        s_mul_i32 s48, s48, {2 * 3072}
        s_lshl_b32 s49, {s(sCG)}, 6
        s_add_u32 s48, s48, s49
        s_add_u32 s58, s6, s48
        s_addc_u32 s59, s7, 0""")
        for g in range(spf, 8):
            for r in range(8): a(f"s_load_dword s3, s[56:57], {g * 128 + r * 1024}")
            for r in range(2):
                for c in range(3): a(f"s_load_dword s3, s[58:59], {((g * 64 + r) * 3072 + c * 1024) if g * 64 * 3072 < (1 << 20) - 8192 else 0}" if False else f"s_load_dword s3, s[58:59], s48 offset:{r * 3072 + c * 1024}".replace("s48", "s48") if a(f"s_mov_b32 s48, {g * 64 * 3072}") is None else "")
    a.label(L('stats'))
    UNP = BUF + 16
    a(f"s_add_u32 s49, {s(sG)}, 1")
    lds_ge(a, L('b_full'), vCNT, 8, "s49")
    for p in range(4): a(f"ds_read_b128 {v(BUF + 4*p, 4)}, {v(AX + p)}")
    if pf: pf_issue()
    deltas(False)
    emit(adv[0::2], f"v_min_u32 v9, 7, {s(sG)}" if False else f"s_min_u32 s48, {s(sG)}, 7", "v_mov_b32 v9, s48")
    for hf in range(2):
        a(f"s_waitcnt lgkmcnt({2 - 2*hf})")
        if hf: a(f"ds_write_b32 {v(vMINE)}, v9")
        a(sm(BUF + 8*hf, CSA))
        if not sq_dot:
            for i in range(8):
                a(f"v_lshlrev_b32 {v(UNP + 2*i)}, 16, {v(BUF + 8*hf + i)}\nv_and_b32 {v(UNP + 2*i + 1)}, 0xffff0000, {v(BUF + 8*hf + i)}")
            for i in range(16): a(f"v_fmac_f32 {v(SQ)}, {v(UNP + i)}, {v(UNP + i)}")
    if sq_dot:
        for i in range(16): a(f"v_dot2c_f32_bf16 {v(SQ)}, {v(BUF + i)}, {v(BUF + i)}")
    a(f"""s_cmp_lt_u32 {s(sG)}, 8
    s_cbranch_scc1 {L('stats')}""")
    a(f"""s_lshl_b32 s48, {s(sW4)}, 8
    s_add_u32 s48, s48, {STX}
    v_lshl_add_u32 v7, v2, 3, s48
    v_mov_b32 v10, {v(SQ)}
    v_add_f32 v8, {v(CSA)}, {v(CSA+1)}
    v_mov_b32 v6, v10
    v_mov_b32 v9, v8
    s_lshr_b32 s49, {s(sW4)}, 1
    s_and_b32 s56, {s(sW4)}, 1
    v_permlane32_swap_b32 v10, v6
    v_permlane32_swap_b32 v8, v9
    s_nop 0
    v_add_f32 v10, v10, v6
    v_add_f32 v8, v8, v9
    v_mov_b32 v6, {fbits(1.0/512)}
    v_mul_f32 v8, {fbits(-1.0/512)}, v8
    v_mul_f32 v9, v8, v8
    v_fma_f32 v10, v10, v6, -v9
    v_max_f32 v10, 0, v10
    v_cvt_pk_bf16_f32 v10, v10, v10
    v_and_b32 v10, 0xffff0000, v10
    v_add_f32 v10, {fbits(1e-5)}, v10
    v_cvt_pk_bf16_f32 v10, v10, v10
    v_and_b32 v10, 0xffff0000, v10
    v_sqrt_f32 v10, v10
    v_cvt_pk_bf16_f32 v8, v8, v8
    v_cvt_pk_bf16_f32 v10, v10, v10
    v_and_b32 v10, 0xffff0000, v10
    v_rcp_f32 v9, v10
    s_lshl_b32 s57, s49, 13
    s_add_u32 s57, s57, 32768
    ds_write_b64 v7, v[8:9]
    s_cmp_ge_u32 {s(sCG)}, 14
    s_cselect_b32 s58, 16, 8
    v_mov_b32 v9, s58
    ds_write_b32 {v(vMINE)}, v9
    s_lshl_b32 s58, s56, 11
    s_add_u32 s58, s58, {WB}
    s_lshl_b32 s59, s49, 1""")
    addrs("s57", "s58", "s59")
    a(f"""s_mov_b32 {s(sG)}, 8
    s_cmp_ge_u32 {s(sCG)}, 14
    s_waitcnt vmcnt(0)
    s_cbranch_scc1 {L('b_idle')}""")
    if b_prio != s_prio: a(f"s_setprio {b_prio}")
    lds_ge(a, L('b_f8'), vCNT, 8, 9)
    stamp(a, 3)
    def RB(p):
        b = BUF + 16 * p
        r = [f"ds_read_b128 {v(b + 8, 4)}, {v(AX + p)}"]
        for t in range(2):
            r += [f"ds_read_b64_tr_b16 {v(b + 4*t, 2)}, {v(AW + p)} offset:{t * 1024}",
                  f"ds_read_b64_tr_b16 {v(b + 4*t + 2, 2)}, {v(AW + p)} offset:{t * 1024 + 256}"]
        r.insert(3, f"ds_read_b128 {v(b + 12, 4)}, {v(AX + p)} offset:4096")
        return r
    def MB_(p):
        b = BUF + 16 * p
        return [f"{mm} {v(AC + 16*(2*i + t), 16)}, {v(b + 4*t, 4)}, {v(b + 8 + 4*i, 4)}, {v(AC + 16*(2*i + t), 16)}" for t in range(2) for i in range(2)]
    emit(RB(0), RB(1), RB(2), RB(3)[:3])
    a.label(L('ffn1'))
    m0_, m1_, m2_, m3_ = MB_(0), MB_(1), MB_(2), MB_(3)
    emit("s_waitcnt lgkmcnt(15)", m0_[0], RB(3)[3:], flagrd, m0_[1:], sm(BUF, CSB),
         f"s_cmp_eq_u32 {s(sG)}, 15", "s_waitcnt lgkmcnt(13)", m1_[0], f"s_cbranch_scc1 {L('ffn1_x')}")
    deltas(True)
    emit(f"s_add_u32 s49, {s(sG)}, 1", f"v_mov_b32 v9, {s(sG)}", m1_[1], adv[:4], sm(BUF + 16, CSB), adv[4:], m1_[2], "s_waitcnt lgkmcnt(0)",
         f"ds_write_b32 {v(vMINE)}, v9", "v_cmp_gt_u32 vcc, s49, v8", m1_[3], f"s_cbranch_vccnz {L('ffn1_s')}")
    a.label(L('ffn1_b'))
    emit(m2_[0], RB(0)[:3], m2_[1], RB(0)[3:], m2_[2], RB(1)[:3], m2_[3], RB(1)[3:],
         m3_[0], RB(2)[:3], m3_[1], RB(2)[3:], m3_[2], m3_[3], RB(3)[:3], f"s_branch {L('ffn1')}")
    slowwait('ffn1_s', 'ffn1_b')
    a.label(L('ffn1_x'))
    if bx_prio is not None: a(f"s_setprio {bx_prio}")
    emit(m1_[1], sm(BUF + 16, CSB), m1_[2:], f"""s_lshr_b32 s49, {s(sW4)}, 1
    s_lshl_b32 s48, s56, 10
    s_add_u32 s48, s48, {CSX}
    s_lshl_b32 s57, s49, 2
    s_add_u32 s57, s57, s48
    v_add_u32 v5, s57, v1
    s_waitcnt lgkmcnt(7)""", m2_[0], f"v_add_f32 v4, {v(CSB)}, {v(CSB+1)}", m2_[1])
    cs_pack(4, 6)
    emit(m2_[2:], "v_mov_b32 v9, 16", "s_waitcnt lgkmcnt(0)", m3_[0], "ds_write_b32 v5, v6", f"ds_write_b32 {v(vMINE)}, v9", m3_[1])
    MT, CF, HPK = 84, 92, 4 + 0
    a(f"""v_lshl_add_u32 v5, v2, 4, s48
    s_lshl_b32 s57, s49, 9
    s_add_u32 s57, s57, {STX}
    v_lshl_add_u32 v7, v2, 3, s57
    s_lshl_b32 s57, {s(sRB)}, 2
    s_lshl_b32 s58, s49, 1
    s_add_u32 s57, s57, s58
    s_mul_i32 s48, s57, 112
    s_lshl_b32 s57, {s(sCG)}, 3
    s_add_u32 s48, s48, s57
    s_lshl_b32 s57, s56, 2
    s_add_u32 s48, s48, s57
    s_lshl_b32 s48, s48, 10
    s_add_u32 s48, s48, {HF}
    s_add_u32 s49, s48, {112 * 1024}""")
    emit(m3_[2], f"v_add_u32 v4, 32, {v(vCNT)}", m3_[3])
    stamp(a, 5)
    lds_ge(a, L('e2'), 4, 8, 16)
    a(f"""ds_read_b32 v8, v7
    ds_read_b32 v9, v7 offset:256
    ds_read_b64 {v(CF,2)}, v5
    ds_read_b64 {v(CF+4,2)}, v5 offset:512
    v_cmp_eq_u32 vcc, 0, v3
    v_mov_b32 v10, 0""")
    for r in (CF+2, CF+3, CF+6, CF+7, MT+2, MT+3, MT+6, MT+7): a(f"v_mov_b32 {v(r)}, 0")
    a("s_waitcnt lgkmcnt(2)")
    for i in range(2):
        for k in range(2): a(f"v_cndmask_b32 {v(MT + 4*i + k)}, v10, {v(8 + i)}, vcc")
    a("s_nop 0\ns_waitcnt lgkmcnt(0)")
    for i in range(2):
        for t in range(2):
            d = v(AC + 16*(2*i + t), 16)
            a(f"{mm} {d}, {v(CF + 4*t, 4)}, {v(MT + 4*i, 4)}, {d}")
    a(f"v_mov_b32 v9, {CNT + O_GO}")
    lds_ge(a, L('b_q'), 9, 8, 1)
    qload()
    attn_init()
    HP = (4, 12, 20, 28)
    vMINE2 = 73
    if late_win == 17: a(f"v_mov_b32 {v(vMINE2)}, {v(vMINE)}")
    for n in range(4):
        for k in range(8): a(f"v_cvt_pk_bf16_f32 {v(HP[n] + k)}, {v(AC + 16*n + 2*k)}, {v(AC + 16*n + 2*k + 1)}")
        for k in range(8): a(f"v_pk_max_i16 {v(HP[n] + k)}, {v(HP[n] + k)}, 0")
    stamp(a, 6)
    hst = [f"buffer_store_dwordx4 {v(HP[n] + 4*sx, 4)}, v1, {s(sWS,4)}, {('s52', 's53')[n >> 1]} offen offset:{(n & 1) * 2048 + sx * 1024} sc1" for n in range(4) for sx in range(2)]
    a("s_mov_b32 s52, s48\ns_mov_b32 s53, s49")
    if not hin: emit(hst)
    if late_win == 17: emit([f"v_mov_b32 v2, 17", f"ds_write_b32 {v(vMINE2)}, v2"])
    a(f"s_mov_b32 s56, {f2_it}\ns_mov_b32 s57, {h_it if hin else -1}\ns_setprio {p0b}")
    lds_ge(a, L('b_kv0'), vCNT, 2, 1, off=O_KV)
    a(f"s_waitcnt vmcnt({0 if hin else 8})\ns_branch {L('attn')}")
    a.label(L('b_idle'))
    attn_init()
    a(f"s_mov_b32 s56, {f2_it}")
    a.label(L('attnq'))
    a("s_mov_b32 s57, -1")
    a(f"v_mov_b32 v9, {CNT + O_GO}")
    lds_ge(a, L('a_q'), 9, 8, 1, sleep=sl1)
    qload()

    stamp(a, 6)
    lds_ge(a, L('kv0'), vCNT, 2, 1, off=O_KV)
    a(f"s_setprio {p0a}\ns_waitcnt vmcnt(0)")
    a.label(L('attn'))
    sIT = 44
    a(f"s_mov_b32 {s(sIT)}, 0")
    stamp(a, 7)
    a(f"""s_lshl_b32 s45, {s(sRO)}, 11
    s_sub_u32 s45, {PRO - WIN[0]}, s45
    v_add_u32 v2, s45, {v(vK)}
    s_mul_i32 s45, {s(sRO)}, 3072
    s_sub_u32 s45, {PRO + 4096 - WIN[0] - 8192}, s45
    v_mad_i32_i24 v3, {v(vST)}, s45, {v(vV)}
    {mm} {v(SB,16)}, {v(ZQ,4)}, {v(ZQ,4)}, 0
    ds_read_b128 {v(KK,4)}, v2
    ds_read_b128 {v(VV,4)}, v3
    ds_read_b128 {v(VV+4,4)}, v3 offset:256
    ds_read_b128 {v(VV+12,4)}, v3 offset:256
    ds_read_b128 {v(KK+4,4)}, v2 offset:1024
    s_mov_b32 s45, {WIN[1] - WIN[0]}
    s_mov_b32 s46, 16384
    s_waitcnt lgkmcnt(4)""")
    a(f"""{mm} {v(SA,16)}, {v(KK,4)}, {v(QA,4)}, 0
    s_nop 7""")
    SM = lambda O, Vr, S: f"v_smfmac_f32_32x32x32_bf16 {v(O,16)}, {v(Vr,4)}, {v(S,8)}, {v(vIX)}"
    def phase(S, m1, qk, m0, extra, first, k):
        if first: a(first)
        for i in range(17):
            if i == mpos[0]: a(m1)
            if i == mpos[1]: a(qk)
            if i == mpos[2]: a(m0)
            for n, x in enumerate(extra):
                if xpos[n] == i: a(x)
            if i == 13: hstore(k)
            if i < 16: a(f"v_exp_f32 {v(S+i)}, {v(S+i)}")
    a.label(L('aloop'))
    a(f"""s_sub_u32 s48, {s(sIT)}, 1
    s_cmp_lt_u32 s48, 4
    s_cbranch_scc1 {L('itx')}""")
    a.label(L('itb'))
    for thr, pr in (aprio or ()):
        a(f"s_cmp_lg_u32 {s(sIT)}, {thr}\ns_cbranch_scc1 {L(f'np{thr}')}\ns_setprio {pr}")
        a.label(L(f'np{thr}'))
    if hin: a(f"s_cmp_lg_u32 {s(sIT)}, s57")
    def hstore(k):
        if hin:
            a(f"s_cbranch_scc1 {L(f'hs{k}')}\n{hst[k]}")
            a.label(L(f'hs{k}'))
    for u in range(4):
        b = u & 1
        K0, K1_, V0, V1 = KK + 4*b, KK + 4*(1-b), VV + 8*b, VV + 8*(1-b)
        phase(SA, SM(OB, V1 + 4, SB + 8), f"{mm} {v(SB,16)}, {v(K0,4)}, {v(QB_,4)}, 0", SM(OA, V0, SA),
              [f"ds_read_b128 {v(V1,4)}, {v(vV)} offset:{u * 1024}", f"ds_read_b128 {v(V1+4,4)}, {v(vV)} offset:{u * 1024 + 256}",
               f"ds_read_b128 {v(K0,4)}, {v(vK)} offset:{u * 1024}"], "s_waitcnt lgkmcnt(0)", 2*u)
        phase(SB, SM(OA, V0 + 4, SA + 8), f"{mm} {v(SA,16)}, {v(K1_,4)}, {v(QA,4)}, 0", SM(OB, V0, SB), [], None, 2*u + 1)
    a(f"""v_add_u32 {v(vK)}, s45, {v(vK)}
    v_mad_i32_i24 {v(vV)}, {v(vST)}, s45, {v(vV)}
    s_sub_u32 s45, s46, s45
    s_sub_u32 s46, 0, s46
    s_add_u32 {s(sIT)}, {s(sIT)}, 1
    s_cmp_lt_u32 {s(sIT)}, 8
    s_cbranch_scc1 {L('aloop')}
    {SM(OB, VV + 12, SB + 8)}
    s_mul_i32 s48, {s(sWV)}, 2304
    s_add_u32 s48, s48, {XR - 4 * 2304}
    s_xor_b32 s49, {s(sWV)}, 12
    s_mul_i32 s49, s49, 2304
    s_add_u32 s49, s49, {XR - 4 * 2304}
    v_add_u32 v5, s48, v1
    v_lshl_add_u32 v7, v0, 2, s48""")
    stamp(a, 9)
    a(f"""s_setprio 3
    s_nop 3
    ds_write_b128 v5, {v(OB,4)}
    ds_write_b128 v5, {v(OB+4,4)} offset:1024
    ds_write_b32 v7, {v(OB+8)} offset:2048
    s_lshl_b32 s48, {s(sWV)}, 2
    s_add_u32 s48, s48, {CNT + O_FREE - 16}
    v_mov_b32 v2, s48
    v_mov_b32 v3, 300
    ds_write_b32 v2, v3
    s_xor_b32 s48, {s(sWV)}, 12
    s_lshl_b32 s48, s48, 2
    s_add_u32 s48, s48, {CNT + O_FREE - 16}
    v_mov_b32 v2, s48
    v_add_u32 v5, s49, v1
    v_lshl_add_u32 v7, v0, 2, s49
    s_movk_i32 s50, 300""")
    lds_ge(a, L('pair'), 2, 3, "s50")
    stamp(a, 10)
    a(f"""ds_read_b128 {v(SB,4)}, v5
    ds_read_b128 {v(SB+4,4)}, v5 offset:1024
    ds_read_b32 {v(SB+8)}, v7 offset:2048
    s_lshl_b32 s48, s51, 5
    s_add_u32 s48, s48, {s(sH)}
    s_lshr_b32 s49, s51, 1
    s_lshl_b32 s49, s49, 5
    s_and_b32 s50, {s(sH)}, 3
    s_add_u32 s49, s49, s50
    s_lshl_b32 s49, s49, 3
    s_lshr_b32 s50, {s(sH)}, 2
    s_add_u32 s49, s49, s50
    s_lshl_b32 s49, s49, 1
    s_and_b32 s50, s51, 1
    s_add_u32 s49, s49, s50
    s_lshl_b32 s49, s49, 3
    v_lshl_add_u32 v10, v0, 9, s49
    s_lshl_b32 s48, s48, 10
    s_add_u32 s48, s48, {OF}
    s_mov_b32 s52, {fbits(2.0**-60)}
    s_mov_b32 s53, {fbits(2.0**60)}
    s_mov_b32 s54, 0x7f800000
    s_waitcnt lgkmcnt(0)""")
    for i in range(9): a(f"v_add_f32 {v(OA+i)}, {v(OA+i)}, {v(SB+i)}")
    a(f"v_add_f32 v5, abs({v(OA)}), abs({v(OA+1)})")
    for i in range(2, 8): a(f"v_add_f32 v5, v5, abs({v(OA+i)})")
    a(f"""v_cmp_nlt_f32 s[56:57], s52, {v(OA+8)}
    v_cmp_ngt_f32 s[58:59], s53, {v(OA+8)}
    v_cmp_ngt_f32 vcc, s54, v5
    s_nop 0
    s_or_b64 s[56:57], s[56:57], s[58:59]
    s_or_b64 s[56:57], s[56:57], vcc""")
    a(f"s_branch {L('slow')}" if force_fallback else f"s_cbranch_scc1 {L('slow')}")
    a.label(L('fin'))
    a(f"v_rcp_f32 v6, {v(OA+8)}\ns_nop 0")
    for i in range(8): a(f"v_mul_f32 {v(OA+i)}, {v(OA+i)}, v6")
    for i in range(4): a(f"v_cvt_pk_bf16_f32 {v(PA+i)}, {v(OA+2*i)}, {v(OA+2*i+1)}")
    a(f"""buffer_store_dwordx4 {v(PA,4)}, v1, {s(sWS,4)}, s48 offen sc1
    s_waitcnt vmcnt(0)""")
    stamp(a, 11)
    flag_push(a, 10, 8, 8, F3)
    stamp_end(a, 0, sWV)
    a("s_endpgm")
    a.label(L('itx'))
    a(f"""s_add_u32 s48, {s(sIT)}, 1
    s_cmp_eq_u32 {s(sIT)}, 4
    s_cselect_b32 s50, 8, s48""")
    def itstamp(it, idx):
        if asmlib.TRACE and asmlib.LITE and idx in asmlib.LITE_SET:
            a(f"s_cmp_lg_u32 {s(sIT)}, {it}\ns_cbranch_scc1 {L(f'ist{idx}')}")
            stamp(a, idx)
            a.label(L(f'ist{idx}'))
    itstamp(1, 1); itstamp(2, 10)
    lds_ge(a, L('kvw'), vCNT, 2, "s50", off=O_KV)
    itstamp(1, 2); itstamp(2, 12)
    a(f"""s_cmp_eq_u32 {s(sIT)}, 4
    s_cbranch_scc1 {L('it4')}
    s_cmp_lg_u32 {s(sIT)}, s56
    s_cbranch_scc1 {L('itb')}""")
    stamp(a, 8)
    a("s_waitcnt vmcnt(0)")
    f2_arrive(a, L('f2b'), vCNT, 4)
    a(f"s_branch {L('itb')}")
    a.label(L('it4'))
    a(f"""s_lshl_b32 s48, {s(sWV)}, 2
    s_add_u32 s48, s48, {CNT + O_FREE - 16}
    v_mov_b32 v2, s48
    v_mov_b32 v3, 200
    ds_write_b32 v2, v3
    s_branch {L('itb')}""")
    a.label(L('slow'))
    vM, vN, vT = 5, 6, 7
    a(f"""s_lshl_b32 s52, {s(sH)}, 16
    s_add_u32 s52, s52, {KF}
    s_add_u32 s53, s52, {VF - KF}
    v_and_b32 v2, 15, v0
    v_lshlrev_b32 v2, 4, v2
    v_lshrrev_b32 v3, 5, v0
    v_lshl_add_u32 v2, v3, 9, v2
    v_mov_b32 {v(vM)}, 0xff800000
    s_mov_b32 {s(sIT)}, 0""")
    for i in range(16): a(f"v_mov_b32 {v(OA + i)}, 0")
    for i in range(8): a(f"v_mov_b32 {v(VV + i)}, 0x3f803f80")
    a.label(L('sloop'))
    a(f"""buffer_load_dwordx4 {v(KK,4)}, v1, {s(sWS,4)}, s52 offen sc1
    s_mov_b32 exec_lo, 0xffff
    s_mov_b32 exec_hi, 0xffff
    buffer_load_dwordx4 {v(VV,4)}, v2, {s(sWS,4)}, s53 offen sc1
    buffer_load_dwordx4 {v(VV+4,4)}, v2, {s(sWS,4)}, s53 offen offset:256 sc1
    s_mov_b64 exec, -1
    s_add_u32 s52, s52, 1024
    s_add_u32 s53, s53, 1024
    s_waitcnt vmcnt(0)
    {mm} {v(SA,16)}, {v(KK,4)}, {v(QA,4)}, 0
    s_nop 11
    v_max3_f32 {v(vN)}, {v(SA)}, {v(SA+1)}, {v(vM)}""")
    for i in range(1, 8): a(f"v_max3_f32 {v(vN)}, {v(SA+2*i)}, {v(SA+2*i+1)}, {v(vN)}")
    a(f"""v_mov_b32 {v(vT)}, {v(vN)}
    s_nop 1
    v_permlane32_swap_b32 {v(vT)}, {v(vN)}
    s_nop 1
    v_max_f32 {v(vN)}, {v(vN)}, {v(vT)}
    v_sub_f32 {v(vT)}, {v(vM)}, {v(vN)}
    v_exp_f32 {v(vT)}, {v(vT)}
    v_mov_b32 {v(vM)}, {v(vN)}""")
    for i in range(16): a(f"v_sub_f32 {v(SA+i)}, {v(SA+i)}, {v(vN)}")
    for i in range(16): a(f"v_mul_f32 {v(OA+i)}, {v(OA+i)}, {v(vT)}")
    for i in range(16): a(f"v_exp_f32 {v(SA+i)}, {v(SA+i)}")
    a(f"""s_add_u32 {s(sIT)}, {s(sIT)}, 1
    s_cmp_lt_u32 {s(sIT)}, 64
    {SM(OA, VV, SA)}
    {SM(OA, VV + 4, SA + 8)}
    s_nop 11
    s_cbranch_scc1 {L('sloop')}
    s_branch {L('fin')}""")
    a.label(L('end'))
    a("s_endpgm")
    if "ld" in dbg:
        i0 = a.lines.index(L('ffn') + ":"); i1 = a.lines.index(L('cons') + ":")
        a.lines = [x for i, x in enumerate(a.lines) if not (i0 < i < i1 and x.startswith("s_memtime") and "94" not in x)]
    if dbg:
        i0 = a.lines.index(L('cons') + ":"); i1 = a.lines.index(L('b_idle') + ":")
        lo = a.lines.index(L('load_idle') + ":")
        out = []
        for i, x in enumerate(a.lines):
            if i0 < i < i1:
                if "nosm" in dbg and "smfmac" in x: continue
                if "nosq" in dbg and x.startswith("v_dot2c"): continue
                if "nord" in dbg and (x.startswith("ds_read_b64_tr") or (x.startswith("ds_read_b128") and x.split()[-1] in ("v12", "v13", "v14", "v15"))): continue
                if "notr" in dbg and x.startswith("ds_read_b64_tr"): continue
                if "nomm" in dbg and x.startswith("v_mfma"): continue
            if i < lo and "nodma" in dbg and x.endswith("lds"): continue
            out.append(x)
        a.lines = out
    txt = a.text()
    nbytes = code_size(txt.replace("CODE_SHARE", "4096").replace("CODE_LAST", "0x4000").replace("CODE_MASK", "0xffffff"))
    lines = -(-nbytes // 128); share = -(-lines // 8)
    assert share <= 32
    return txt.replace("CODE_SHARE", str(share * 128)).replace("CODE_LAST", hex(nbytes - 4)).replace("CODE_MASK", hex((1 << share) - 1))

def code_size(txt):
    import subprocess
    open("_sz.s", "w").write('.amdgcn_target "amdgcn-amd-amdhsa--gfx950"\n.text\n' + txt)
    subprocess.run(["clang", "-c", "-x", "assembler", "-target", "amdgcn-amd-amdhsa", "-mcpu=gfx950", "_sz.s", "-o", "_sz.o"], check=True)
    out = subprocess.run(["llvm-objdump", "-h", "_sz.o"], capture_output=True, text=True).stdout
    return int([l for l in out.split("\n") if ".text" in l][0].split()[2], 16)

NAME = "recurrent_scan__softmax_full_mha__dense_activation_relu__prompt"
HDR = open(f"cdna_kernels/{NAME}.s.ref").read().split("; Override launch")[0]
def write(path, strict=True, quiet=False, **kw):
    kn = NAME + "_kernel"
    t = gen("L", **kw)
    errs = lint(t, path)
    for e in ([] if quiet else errs): print(e)
    assert not (strict and errs)
    out = HDR + f"; @launch grid=(256,1,1) block=(768,1,1) lds={LDS_BYTES}\n" + '.amdgcn_target "amdgcn-amd-amdhsa--gfx950"\n' + khead(kn) + t + kdesc(kn, NVGPR)
    open(path, "w").write(out)

if __name__ == "__main__":
    write("f.s")
    write("f_slow.s", force_fallback=True)
    asmlib.TRACE = True
    write("f_trace.s")
    import sys
    for d in sys.argv[1:]:
        kw = {}; dl = []
        for x in d.split("+"):
            if "=" in x: k, val = x.split("="); kw[k] = eval(val)
            else: dl.append(x)
        write(f"f_trace_{d}.s", strict=False, quiet=True, dbg=dl, **kw)

def write_probe(path, rt_at, wave, factor, red="max", **kw):
    import probe
    asmlib.TRACE = True; asmlib.RT_AT = rt_at
    t = gen("L", **kw); asmlib.RT_AT = 0
    pn, pt, pv, pg, pb, pl = probe.gen_probe("p_kernel", 0, 0, 0, 0, 1, wave, factor, False, "min", red)
    out = HDR + f"; @launch kernel=m_kernel grid=(256,1,1) block=(768,1,1) lds={LDS_BYTES}\n; @launch kernel=p_kernel grid=(1,1,1) block=(256,1,1) lds=64\n"
    out += '.amdgcn_target "amdgcn-amd-amdhsa--gfx950"\n' + khead("m_kernel") + t + kdesc("m_kernel", NVGPR) + khead(pn) + pt + kdesc(pn, pv)
    open(path, "w").write(out)
```
